```python
import torch

def _softmax(x, axis=-1):
    return torch.softmax(x, dim=axis)
def _gelu(x):
    return torch.nn.functional.gelu(x, approximate="tanh")
def _silu(x):
    return torch.nn.functional.silu(x)
def _sigmoid(x):
    return torch.sigmoid(x)
def _layernorm(x, axis=-1, eps=1e-5):
    m = x.mean(dim=axis, keepdim=True)
    v = x.var(dim=axis, keepdim=True, unbiased=False)
    return (x - m) / torch.sqrt(v + eps)
def _scatter_add(tgt, idx, src, axis=0):
    return tgt.clone().index_add_(axis, idx, src)
def _segment_sum(src, seg, n):
    out = torch.zeros((n,) + src.shape[1:], dtype=src.dtype)
    return out.index_add_(0, seg, src)
def _pad(x, pw):
    flat = tuple(v for pair in reversed(pw) for v in pair)
    return torch.nn.functional.pad(x, flat)

kernel_name = 'concat_heads__mha_block_cached__gqa_block_cached__near_ridge'

def setup_inputs():

    _w = (lambda a: (lambda t: t.to(torch.bfloat16) if t.is_floating_point() else t)(torch.as_tensor(a)))
    def _A_setup():
        B, Sq, D = 8, 192, 448
        H, Sk, Dh = 16, 1024, 256
        return {
            "x": _w((lambda *s: torch.randn(*s, dtype=torch.bfloat16) * 0.8)(B, Sq, D)),
            "k_cache": _w((lambda *s: torch.randn(*s, dtype=torch.bfloat16) * 0.8)(B, H, Sk, Dh)),
            "v_cache": _w((lambda *s: torch.randn(*s, dtype=torch.bfloat16) * 0.05)(B, H, Sk, Dh)),
            "wq": _w((lambda *s: torch.randn(*s, dtype=torch.bfloat16) * 0.8)(D, H * Dh) * (D ** -0.5)),
            "wo": _w((lambda *s: torch.randn(*s, dtype=torch.bfloat16) * 0.05)(H * Dh, D) * ((H * Dh) ** -0.5)),
        }
    _A_in = _A_setup()

    def _B_setup():
        B, Sq, D = 8, 192, 448
        Hq, Hkv, Sk, Dh = 16, 16, 1024, 256
        assert Hq % Hkv == 0, (Hq, Hkv)
        return {
            "x": _w((lambda *s: torch.randn(*s, dtype=torch.bfloat16) * 0.8)(B, Sq, D)),
            "k_cache": _w((lambda *s: torch.randn(*s, dtype=torch.bfloat16) * 0.8)(B, Hkv, Sk, Dh)),
            "v_cache": _w((lambda *s: torch.randn(*s, dtype=torch.bfloat16) * 0.05)(B, Hkv, Sk, Dh)),
            "wq": _w((lambda *s: torch.randn(*s, dtype=torch.bfloat16) * 0.8)(D, Hq * Dh) * (D ** -0.5)),
            "wo": _w((lambda *s: torch.randn(*s, dtype=torch.bfloat16) * 0.05)(Hq * Dh, D) * ((Hq * Dh) ** -0.5)),
        }
    _B_in = _B_setup()

    return {
        "A_x": _A_in["x"],
        "A_k_cache": _A_in["k_cache"],
        "A_v_cache": _A_in["v_cache"],
        "A_wq": _A_in["wq"],
        "A_wo": _A_in["wo"],
        "B_x": _B_in["x"],
        "B_k_cache": _B_in["k_cache"],
        "B_v_cache": _B_in["v_cache"],
        "B_wq": _B_in["wq"],
        "B_wo": _B_in["wo"],
    }

def reference(A_x, A_k_cache, A_v_cache, A_wq, A_wo, B_x, B_k_cache, B_v_cache, B_wq, B_wo):
    def _A_ref(x, k_cache, v_cache, wq, wo):
        B, Sq, D = x.shape
        H, Dh = 16, 256
        q = (lambda x, *d: x.permute(*d))((x @ wq).reshape(B, Sq, H, Dh), 0, 2, 1, 3)
        scores = torch.einsum("bhqd,bhkd->bhqk", q, k_cache) * (Dh ** -0.5)
        p = _softmax(scores, axis=-1)
        o = torch.einsum("bhqk,bhkd->bhqd", p, v_cache)
        return (lambda x, *d: x.permute(*d))(o, 0, 2, 1, 3).reshape(B, Sq, H * Dh) @ wo

    def _B_ref(x, k_cache, v_cache, wq, wo):
        B, Sq, D = x.shape
        Hq, Dh = 16, 256
        Hkv = k_cache.shape[1]
        rep = Hq // Hkv
        q = (lambda x, *d: x.permute(*d))((x @ wq).reshape(B, Sq, Hq, Dh), 0, 2, 1, 3)
        k = (lambda x, n, axis: torch.repeat_interleave(x, n, dim=axis))(k_cache, rep, axis=1)
        v = (lambda x, n, axis: torch.repeat_interleave(x, n, dim=axis))(v_cache, rep, axis=1)
        scores = torch.einsum("bhqd,bhkd->bhqk", q, k) * (Dh ** -0.5)
        p = _softmax(scores, axis=-1)
        o = torch.einsum("bhqk,bhkd->bhqd", p, v)
        return (lambda x, *d: x.permute(*d))(o, 0, 2, 1, 3).reshape(B, Sq, Hq * Dh) @ wo

    a = _A_ref(A_x, A_k_cache, A_v_cache, A_wq, A_wo)
    b = _B_ref(B_x, B_k_cache, B_v_cache, B_wq, B_wo)
    return torch.concatenate([a, b], axis=-1)
```

```python
import re

TRANS = ("v_exp_f32", "v_log_f32", "v_rcp_f32", "v_rsq_f32", "v_sqrt_f32")
_REG = re.compile(r"^-?([vas])(\d+)$")
_RNG = re.compile(r"^-?([vas])\[(\d+):(\d+)\]$")


def regs_of(op):
    op = op.strip()
    m = _REG.match(op)
    if m:
        return [m.group(1) + m.group(2)]
    m = _RNG.match(op)
    if m:
        return [m.group(1) + str(i) for i in range(int(m.group(2)), int(m.group(3)) + 1)]
    if op in ("vcc", "m0", "exec"):
        return [op]
    return []


def R(f, i, n=1):
    return f"{f}{i}" if n == 1 else f"{f}[{i}:{i + n - 1}]"


class I:
    def __init__(self, text, tag=None):
        self.text = text
        self.tag = tag
        self.deps = []
        self.done = False
        self.target = 0
        self.srcc = []
        self.ab = []
        t = text.split(";")[0].strip()
        if t.endswith(":") or t.startswith("."):
            self.kind, self.rd, self.wr, self.mn = "label", [], [], t
            return
        parts = t.split(None, 1)
        mn = self.mn = parts[0]
        ops = []
        if len(parts) > 1:
            ops = [o.strip() for o in parts[1].split(",")]
            last = ops[-1].split()
            ops[-1] = last[0]
            self.mods = last[1:]
        else:
            self.mods = []
        rs = [regs_of(o) for o in ops]
        flat = lambda l: [x for y in l for x in y]
        if mn.startswith("v_mfma"):
            self.kind, self.wr, self.rd = "mfma", rs[0], flat(rs[1:])
            self.srcc, self.ab = rs[3], rs[1] + rs[2]
        elif mn.startswith("v_permlane"):
            self.kind, self.wr, self.rd = "valu", flat(rs), flat(rs)
        elif mn.startswith("v_cndmask"):
            self.kind, self.wr, self.rd = "valu", rs[0], flat(rs[1:])
        elif mn.startswith("v_"):
            self.kind = "trans" if mn.replace("_e32", "").replace("_e64", "") in TRANS else "valu"
            self.wr, self.rd = rs[0], flat(rs[1:])
            if mn.startswith("v_fmac"):
                self.rd = self.rd + rs[0]
        elif mn.startswith("ds_read"):
            self.kind, self.wr, self.rd = "ds", rs[0], flat(rs[1:])
        elif mn.startswith("ds_"):
            self.kind, self.wr, self.rd = "ds", [], flat(rs)
        elif mn.startswith("buffer_load") or mn.startswith("global_load"):
            self.kind = "vmem"
            if "lds" in self.mods:
                self.wr, self.rd = [], flat(rs) + ["m0"]
            else:
                self.wr, self.rd = rs[0], flat(rs[1:])
        elif mn.startswith("buffer_atomic") or mn.startswith("global_atomic"):
            self.kind, self.rd = "vmem", flat(rs)
            self.wr = rs[0] if "sc0" in self.mods else []
        elif mn.startswith("buffer_") or mn.startswith("global_"):
            self.kind, self.wr, self.rd = "vmem", [], flat(rs)
        elif mn == "s_waitcnt":
            self.kind, self.wr, self.rd = "wait", [], []
            m = re.search(r"vmcnt\((\d+)\)", t)
            self.vm = int(m.group(1)) if m else None
            m = re.search(r"lgkmcnt\((\d+)\)", t)
            self.lg = int(m.group(1)) if m else None
        elif mn == "s_barrier":
            self.kind, self.wr, self.rd = "bar", [], []
        elif mn in ("s_nop", "s_sleep", "s_setprio", "s_endpgm"):
            self.kind, self.wr, self.rd = "salu", [], []
        elif mn.startswith("s_cbranch") or mn in ("s_branch", "s_setpc_b64", "s_call_b64"):
            self.kind, self.wr, self.rd = "branch", [], []
        elif mn.startswith("s_load") or mn.startswith("s_mem"):
            self.kind, self.wr, self.rd = "smem", rs[0], flat(rs[1:])
        elif mn.startswith("s_cmp"):
            self.kind, self.wr, self.rd = "salu", [], flat(rs)
        elif mn.startswith("s_"):
            self.kind, self.wr, self.rd = "salu", rs[0], flat(rs[1:])
        else:
            raise ValueError(text)

    @property
    def states(self):
        if self.kind == "label":
            return 0
        if self.mn == "s_nop":
            return int(self.text.split()[1]) + 1
        return 1

    @property
    def vec_cost(self):
        if self.kind == "trans":
            return 2
        if self.kind == "label":
            return 0
        return 1

    @property
    def scalar(self):
        return self.kind in ("salu", "wait", "bar", "branch", "smem")


class Counters:
    def __init__(self):
        self.ds = []
        self.vm = []

    def see(self, ins):
        if ins.kind == "ds":
            self.ds.append(ins)
        elif ins.kind == "vmem":
            self.vm.append(ins)
        elif ins.kind == "wait":
            if ins.lg is not None:
                self.ds = self.ds[max(0, len(self.ds) - ins.lg):] if ins.lg else []
                assert len(self.ds) <= ins.lg
            if ins.vm is not None:
                self.vm = self.vm[max(0, len(self.vm) - ins.vm):] if ins.vm else []

    def need(self, q, pred):
        last = None
        for k, x in enumerate(q):
            if pred(x):
                last = k
        return None if last is None else len(q) - 1 - last


class Lazy:
    def __init__(self, fn):
        self.fn = fn
        self.deps = []
        self.done = False
        self.target = 0
        self.scalar = True
        self.vec_cost = 1
        self.kind = "lazy"


class Timeline:
    def __init__(self, cnt):
        self.cnt = cnt
        self.mf = []
        self.streams = {}
        self.out = []
        self.age = {}

    def pos(self):
        return len(self.mf)

    def mfma(self, text, needs=(), frag=None):
        m = I(text)
        m.needs = list(needs)
        m.frag = frag
        self.mf.append(m)
        return m

    def add(self, stream, item, target, deps=()):
        if isinstance(item, str):
            item = I(item)
        item.target = target
        item.deps = list(deps)
        item.stream = stream
        self.streams.setdefault(stream, []).append(item)
        return item

    def spread(self, stream, items, lo, hi, deps=()):
        items = [I(x) if isinstance(x, str) else x for x in items]
        tot = sum(x.vec_cost for x in items) or 1
        acc = 0
        for x in items:
            self.add(stream, x, lo + (hi - lo) * acc / tot, list(x.deps) + list(deps))
            acc += x.vec_cost
        return items

    def _put(self, ins):
        self.out.append(ins)
        self.cnt.see(ins)
        if ins.kind == "ds":
            self.age[id(ins)] = self.k

    def _emit(self, item):
        s = self.streams[item.stream]
        assert s[0] is item
        s.pop(0)
        item.done = True
        if isinstance(item, Lazy):
            for x in item.fn(self.cnt):
                self._put(x)
        else:
            self._put(item)

    def _force(self, item):
        if item.done:
            return
        assert item.kind != "mfma", "forced item depends on a later MFMA: " + item.text
        s = self.streams[item.stream]
        while not item.done:
            h = s[0]
            for d in h.deps:
                self._force(d)
            self._emit(h)

    def _frag_wait(self, m, lookahead):
        rd = set(m.rd)
        n = self.cnt.need(self.cnt.ds, lambda x: rd & set(x.wr))
        if n is None:
            return False
        n2 = self.cnt.need(self.cnt.ds, lambda x: self.k - self.age.get(id(x), -99) >= lookahead)
        if n2 is not None:
            n = min(n, n2)
        self._put(I(f"s_waitcnt lgkmcnt({min(n, 15)})"))
        return True

    def run(self, lookahead=10):
        self.k = 0
        n = len(self.mf)
        for k in range(n + 1):
            self.k = k
            nxt = self.mf[k] if k < n else None
            free_scalar = k > 0
            budget = 2
            if nxt is not None and all(d.done for d in nxt.needs):
                if self._frag_wait(nxt, lookahead):
                    free_scalar = False
            while True:
                heads = [s[0] for s in self.streams.values() if s and s[0].target <= k and all(d.done for d in s[0].deps)]
                if free_scalar:
                    sc = [h for h in heads if h.scalar]
                    if sc:
                        self._emit(min(sc, key=lambda h: h.target))
                        free_scalar = False
                        continue
                heads = [h for h in heads if h.vec_cost <= budget]
                if not heads:
                    break
                h = min(heads, key=lambda h: h.target)
                budget -= h.vec_cost
                free_scalar = False
                self._emit(h)
            if nxt is None:
                break
            for d in nxt.needs:
                self._force(d)
            self._frag_wait(nxt, lookahead)
            nxt.done = True
            self._put(nxt)
        rest = sorted((x for s in self.streams.values() for x in s), key=lambda x: x.target)
        for x in rest:
            self._force(x)
        return self.out


def need_states(p, c):
    pw, need = set(p.wr), 0
    crd, cwr = set(c.rd), set(c.wr)
    vec = ("valu", "trans")
    if p.kind == "mfma":
        if c.kind == "mfma":
            if pw & set(c.ab):
                need = 8
            elif pw & set(c.srcc) and p.wr != c.srcc:
                need = 6
            elif pw & cwr and p.wr != c.srcc:
                need = 8
        elif c.kind in vec + ("ds", "vmem"):
            if pw & (crd | cwr):
                need = 8
        if c.kind in vec and set(p.srcc) & cwr:
            need = max(need, 3)
    elif p.kind in vec:
        vw = {r for r in pw if r[0] in "va" and r != "vcc"}
        sw = pw - vw
        if c.kind == "mfma" and vw & crd:
            need = 2
        if c.mn.startswith("v_permlane") and vw & crd:
            need = 2
        if c.mn.startswith("v_read") and vw & crd:
            need = max(need, 1)
        if p.kind == "trans" and c.kind != "mfma" and vw & crd:
            need = max(need, 1)
        if c.kind in vec and sw & crd:
            need = max(need, 2)
        if c.kind == "vmem" and sw & crd:
            need = max(need, 5)
    elif p.kind == "salu":
        if "m0" in pw and c.kind == "vmem" and "m0" in crd:
            need = 1
    elif p.kind == "vmem":
        if "store" in p.mn and ("x4" in p.mn or "x3" in p.mn) and set(p.rd) & cwr:
            need = 2
    return need


def flatten(blocks):
    tr = []
    for b in blocks:
        for _ in range(b.get("count", 1)):
            tr += [(x, b["code"]) for x in b["code"]]
    return tr


def fix_hazards(blocks, maxreps=2):
    total = 0
    while True:
        tr = flatten([dict(b, count=min(b.get("count", 1), maxreps)) for b in blocks])
        fixed = False
        for i, (c, home) in enumerate(tr):
            if c.kind in ("label", "wait", "bar", "branch"):
                continue
            dist, j, short = 0, i - 1, 0
            while j >= 0 and dist < 8:
                p = tr[j][0]
                short = max(short, need_states(p, c) - dist)
                dist += p.states
                j -= 1
            if short > 0:
                k = next(n for n, x in enumerate(home) if x is c)
                home.insert(k, I(f"s_nop {short - 1}"))
                total += 1
                fixed = True
                break
        if not fixed:
            return total


def verify_waits(blocks):
    cnt = Counters()
    fid = {}
    for b in blocks:
        for it in range(b.get("count", 1)):
            off = it * b.get("step", 0)
            for x in b["code"]:
                touch = set(x.rd) | set(x.wr)
                for q, nm in ((cnt.ds, "ds"), (cnt.vm, "vm")):
                    for y in q:
                        if set(y.wr) & touch and not (y.kind == x.kind and not set(y.wr) & set(x.rd)):
                            raise AssertionError(f"{nm} result not waited: {y.text} -> {x.text}")
                if x.kind == "bar" and x.tag:
                    n = x.tag[1] + off
                    assert not cnt.ds, f"barrier {n}: DS reads outstanding"
                    assert fid.get(("n", n), 0) == 8, f"barrier {n}: fill has {fid.get(('n', n), 0)} DMAs"
                    assert not any(fid.get(id(y)) == n for y in cnt.vm), f"barrier {n}: fill not landed"
                z = x
                if x.kind == "vmem" and x.tag and x.tag[0] == "fill":
                    z = I(x.text)
                    fid[id(z)] = x.tag[1] + off
                    fid[("keep", id(z))] = z
                    fid[("n", x.tag[1] + off)] = fid.get(("n", x.tag[1] + off), 0) + 1
                cnt.see(z)


def stats(code):
    cyc, gap, first, h = 0, None, True, {}
    for x in code:
        h[x.kind] = h.get(x.kind, 0) + 1
        if x.kind == "label":
            continue
        if x.kind == "mfma":
            if gap is not None:
                cyc += max(16, gap)
            gap, first = 8, True
            continue
        c = 4 * (x.states if x.mn == "s_nop" else x.vec_cost)
        if gap is None:
            cyc += c
        elif first and x.scalar:
            gap += c - 4
        else:
            gap += c
        first = False
    if gap is not None:
        cyc += max(16, gap)
    return cyc, h
```

```python
import argparse, struct
from asmlib import *

NAME = "concat_heads__mha_block_cached__gqa_block_cached__near_ridge"
f32 = lambda x: hex(struct.unpack("<I", struct.pack("<f", x))[0])

SRD_X, SRD_WQ, SRD_K, SRD_V, SRD_WO, SRD_WS = 8, 12, 16, 20, 24, 28
sW4, sK, sV, sT0, sT1, sCur, sPrev, sDelta, sPos, sNeg, sCnt, sC = 32, 33, 34, 35, 36, 37, 38, 39, 40, 41, 42, 43
sSt0, sSt1, sRet = 4, 5, 6
STAMP0 = 66
vQ, vS, vP = 0, 96, 144
aK, aV, oK, oV, oWq, oWo, oSt = 192, 196, 204, 206, 208, 210, 212
vL, vT, vE, vX, vTmp, vNm = 213, 216, 220, 228, 232, 240
FRAG0 = 192
MF = "v_mfma_f32_16x16x32_bf16"
srd = lambda s: f"s[{s}:{s + 3}]"
S = lambda p, j, qb: vS + p * 24 + (j * 3 + qb) * 4
P = lambda p, qb: vP + p * 12 + qb * 4
O = lambda db, qb: (db * 3 + qb) * 4
QA = lambda db, qb: ((db >> 1) * 3 + qb) * 8 + (db & 1) * 4
QB = lambda ks, qb: (ks * 3 + qb) * 4
ACC = lambda par, qb, nb: 96 + par * 48 + qb * 16 + nb * 4
NSLOT = 5


class Gen:
    def __init__(self, a):
        self.a = a
        self.cnt = Counters()
        self.fc = 0
        self.buf_last = {}
        self.tail = []
        self.nstamp = 0
        self.slow_sites = []
        self.X, self.Y = a.X, a.Y

    def dma(self, n, voff, s, soff, imm, fl):
        fl = (fl + " ") if fl else ""
        return I(f"buffer_load_dwordx4 v{voff}, {srd(s)}, s{soff} offen offset:{imm} {fl}lds", tag=("fill", n))

    def half_kv(self, n, kind):
        s, vo, so = (SRD_K, oK, sK) if kind == "K" else (SRD_V, oV, sV)
        L = [self.dma(n, vo + x, s, so, x * 2048 + j * 1024, self.a.kvfl) for j in range(2) for x in range(2)]
        L.append(I(f"s_add_u32 s{so}, s{so}, 0x4000"))
        if self.a.rot:
            L.append(I(f"s_and_b32 s{so}, s{so}, 0x7ffff"))
        return [], L

    def half_w(self, n, s, vo, offs):
        pre = [I(f"s_mov_b32 s{sT0}, {offs[0]}"), I(f"s_mov_b32 s{sT1}, {offs[1]}")]
        return pre, [self.dma(n, vo + x, s, (sT0, sT1)[j], x * 2048 + j * 1024, self.a.wfl) for j in range(2) for x in range(2)]

    def fill(self, n, dyn=False):
        L = []
        for hs in range(2):
            if n < 7:
                ks = 2 * n + hs
                pre, d = self.half_w(n, SRD_WQ, oWq, [ks * 262144 + j * (32768 - 1024) for j in range(2)])
            elif n == 7:
                pre, d = self.half_kv(n, "K")
            elif n < 38:
                pre, d = self.half_kv(n, "KV"[hs])
            elif n == 38:
                pre, d = self.half_kv(n, "V")
            else:
                pre, d = self.half_w(n, SRD_WO, oWo, [(n - 39) * 128 + hs * 128 * 896 + j * (16 * 896 - 1024) for j in range(2)])
            if dyn:
                m0 = I(f"s_add_u32 m0, s{sPrev}, {hs * 16384}")
            else:
                m0 = I(f"s_add_u32 m0, s{sW4}, {self.slot(n) * 32768 + hs * 16384}")
            L += [m0] + pre + d
        return L

    def slot(self, n):
        return n % NSLOT

    def xload(self, ks):
        return [I(f"buffer_load_dwordx4 {R('a', QB(ks, qb), 4)}, v{vX + qb}, {srd(SRD_X)}, 0 offen offset:{ks * 64} {self.a.xfl}", tag=("x", ks)) for qb in range(3)]

    def kfrag(self, hs, p, j, ks, czero=False):
        rd = [lambda b: f"ds_read_b128 {R('a', b, 4)}, v{aK + (ks & 3)} offset:{hs * 16384 + j * 1024 + (ks >> 2) * 256}"]
        mf = []
        for qb in range(3):
            d = R("v", S(p, j, qb), 4)
            c = d if ks else ("0" if czero else R("v", vNm + qb * 4, 4))
            mf.append(lambda b, d=d, c=c, qb=qb: f"{MF} {d}, {R('a', b, 4)}, {R('v', QB(ks, qb), 4)}, {c}")
        return dict(rd=rd, mf=mf)

    def tfrag(self, hs, db, dst, bop, czero=False):
        rd = [lambda b, j=j: f"ds_read_b64_tr_b16 {R('a', b + 2 * j, 2)}, v{aV + (db & 7)} offset:{hs * 16384 + j * 1024 + (db >> 3) * 256}" for j in range(2)]
        mf = [lambda b, qb=qb: f"{MF} {dst(qb)}, {R('a', b, 4)}, {bop(qb)}, {'0' if czero else dst(qb)}" for qb in range(3)]
        return dict(rd=rd, mf=mf)

    def vfrag(self, hs, p, db):
        return self.tfrag(hs, db, lambda qb: R("a", O(db, qb), 4), lambda qb: R("v", P(p, qb), 4))

    def stamp(self):
        if not self.a.stamps:
            return []
        s = STAMP0 + 4 * self.nstamp
        self.nstamp += 1
        return [I(f"s_memrealtime s[{s}:{s + 1}]"), I(f"s_memtime s[{s + 2}:{s + 3}]"), I("s_waitcnt lgkmcnt(0)")]

    def put_mf(self, tl, f, needs=()):
        f["pos"] = tl.pos()
        f["m"] = [tl.mfma(m(f["buf"]), needs=list(f["ri"]) + list(needs) + list(f.get("needs", [[], [], []])[i])) for i, m in enumerate(f["mf"])]
        self.buf_last[f["buf"]] = f["m"][-1]

    def segment(self, tl, n, frags, hooks=None, dyn=False, upd="KV", last=False, stamp=False, xneed=(), fills=None):
        hooks = hooks or {}
        X, Y = self.X, self.Y
        p0 = tl.pos()
        st = self.stamp() if stamp else []

        def barrier(cnt):
            v = cnt.need(cnt.vm, lambda x: x.tag == ("fill", n) or (x.tag and x.tag[0] == "x" and x.tag[1] in xneed))
            w = "s_waitcnt " + (f"vmcnt({v}) " if v is not None else "") + "lgkmcnt(0)"
            return [I(w), I("s_barrier", tag=("bar", n))] + st
        bar = tl.add("rd", Lazy(barrier), p0)
        tail, self.tail = self.tail, []
        base = p0 + 3 * (len(tail) - X)
        nf = len(frags)
        for i, f in enumerate(frags):
            f["buf"] = FRAG0 + 4 * (self.fc % 16)
            self.fc += 1
            f["ri"] = [I(r(f["buf"])) for r in f["rd"]]
        for f in tail:
            self.put_mf(tl, f)
        seg = dict(p0=p0, p1=tl.pos(), bar=bar, tail=tail, end=p0 + 3 * (len(tail) + nf - (0 if last else X)))
        span = 3.0 * (nf - Y) / nf
        prev_user = {}
        for i, f in enumerate(frags):
            for k, r in enumerate(f["ri"]):
                tl.add("rd", r, base + span * (i + k / len(f["ri"])))
        nhead = nf if last else nf - X
        for i, f in enumerate(frags):
            d = self.buf_last.get(f["buf"])
            if d is not None:
                f["ri"][0].deps.append(d)
            if i < nhead:
                needs = hooks[i](tl, seg) if i in hooks else []
                self.put_mf(tl, f, needs)
            else:
                self.tail.append(f)
        if not last:
            regs = ([aK + i for i in range(4)] if "K" in upd else []) + ([aV + i for i in range(8)] if "V" in upd else [])
            dl = (self.slot(n + 1) - self.slot(n)) * 32768
            src = f"s{sDelta}" if dyn else hex(dl & 0xffffffff)
            ups = [I(f"v_add_u32 v{r}, {src}, v{r}") for r in regs]
        fl = []
        for m in (fills if fills is not None else [n + 4]):
            if m <= 45:
                fl += self.fill(m, dyn)
        if dyn:
            sel = [I(f"s_cmp_ge_u32 s{sCur}, 0x20000"), I(f"s_cselect_b32 s{sDelta}, s{sNeg}, s{sPos}"),
                   I(f"s_mov_b32 s{sPrev}, s{sCur}"), I(f"s_add_u32 s{sCur}, s{sCur}, s{sDelta}")]
            fl += sel
            ups[0].deps = [sel[1]]
        if fl:
            tl.spread("dma", fl, p0 + 1, p0 + 1 + (seg["end"] - p0) * self.a.dmaspan, deps=[bar])
        if not last:
            tl.spread("rd", ups, seg["end"] - 3 * Y, seg["end"] - 1)
        return seg

    def softmax(self, p):
        blocks = [(j, qb) for j in range(2) for qb in range(3)]
        L, post = [], []
        for bi, (j, qb) in enumerate(blocks):
            e = vE + 4 * (bi & 1)
            ex = [f"v_exp_f32 v{e + r}, v{S(p, j, qb) + r}" for r in range(4)]
            for r in range(4):
                L.append(ex[r])
                L += post[2 * r:2 * r + 2]
            t = vT + qb
            post = [f"v_cvt_pk_bf16_f32 v{P(p, qb) + 2 * j}, v{e}, v{e + 1}"]
            post += [f"v_add_f32 v{t}, v{e}, v{e + 1}"] if j == 0 else [f"v_add_f32 v{t}, v{t}, v{e}", f"v_add_f32 v{t}, v{t}, v{e + 1}"]
            post += [f"v_add_f32 v{t}, v{t}, v{e + 2}", f"v_cvt_pk_bf16_f32 v{P(p, qb) + 2 * j + 1}, v{e + 2}, v{e + 3}", f"v_add_f32 v{t}, v{t}, v{e + 3}"]
        L += post
        L += [f"v_max3_f32 v{vTmp}, v{vT}, v{vT + 1}, v{vT + 2}", f"v_cmp_nge_f32 vcc, {f32(self.a.thr)}, v{vTmp}"]
        return [I(x) for x in L]

    def check(self, tl, p, after, target):
        k = len(self.slow_sites)
        self.slow_sites.append(p)
        br = tl.add("sm", Lazy(lambda cnt: [I(f"s_cbranch_vccnz L_slow{k}"), I(f"L_back{k}:")]), target, deps=after)
        return br, [I(f"v_add_f32 v{vL + qb}, v{vL + qb}, v{vT + qb}") for qb in range(3)]

    def xmax(self, regs, op):
        L = []
        for sw in ("v_permlane16_swap_b32", "v_permlane32_swap_b32"):
            L += [f"v_mov_b32 v{vTmp + 4 + i}, v{r}" for i, r in enumerate(regs)]
            L += [f"{sw} v{r}, v{vTmp + 4 + i}" for i, r in enumerate(regs)]
            L += [f"{op} v{r}, v{r}, v{vTmp + 4 + i}" for i, r in enumerate(regs)]
        return L

    def tilemax(self, p):
        L, mx = [], [vTmp + 1 + qb for qb in range(3)]
        for step in range(4):
            for qb in range(3):
                s0, s1 = S(p, 0, qb), S(p, 1, qb)
                v = [s0, s0 + 1, s0 + 2, s0 + 3, s1, s1 + 1, s1 + 2, s1 + 3]
                if step == 0:
                    L.append(f"v_max_f32 v{mx[qb]}, v{v[0]}, v{v[1]}")
                else:
                    L.append(f"v_max3_f32 v{mx[qb]}, v{mx[qb]}, v{v[2 * step]}, v{v[2 * step + 1]}")
        return L + self.xmax(mx, "v_max_f32"), mx

    def slow_routine(self, p):
        L = [f"L_rescale{p}:", "s_nop 15"]
        m, mx = self.tilemax(p)
        L += m
        L += [f"v_max_f32 v{r}, 0, v{r}" for r in mx]
        for qb in range(3):
            L += [f"v_sub_f32 v{vNm + qb * 4 + r}, v{vNm + qb * 4 + r}, v{mx[qb]}" for r in range(4)]
            for pp in range(2):
                for j in range(2):
                    L += [f"v_sub_f32 v{S(pp, j, qb) + r}, v{S(pp, j, qb) + r}, v{mx[qb]}" for r in range(4)]
        L += [f"v_exp_f32_e64 v{r}, -v{r}" for r in mx]
        L += [f"v_mul_f32 v{vL + qb}, v{vL + qb}, v{mx[qb]}" for qb in range(3)]
        for db in range(16):
            for qb in range(3):
                L += [f"v_accvgpr_read_b32 v{vE + r}, a{O(db, qb) + r}" for r in range(4)]
                L += [f"v_mul_f32 v{vE + r}, v{vE + r}, v{mx[qb]}" for r in range(4)]
                L += [f"v_accvgpr_write_b32 a{O(db, qb) + r}, v{vE + r}" for r in range(4)]
        L = [I(x) for x in L] + self.softmax(p)[:-2]
        return L + [I("s_nop 3"), I(f"s_setpc_b64 s[{sRet}:{sRet + 1}]")]

    def steady(self, tl, u, dyn):
        X = self.X
        ks_ = [self.kfrag(0, (u + 1) & 1, j, ks) for j in range(2) for ks in range(8)]
        vs_ = [self.vfrag(1, (u - 1) & 1, db) for db in range(16)]
        nk = 16 - X
        keyed = [((i + 0.5) / nk, f) for i, f in enumerate(ks_[:nk])] + [((i + 0.25) / 16, f) for i, f in enumerate(vs_)]
        frags = [f for _, f in sorted(keyed, key=lambda t: t[0])] + ks_[nk:]
        self.segment(tl, 7 + u, frags, hooks={0: self.sm_hook(u)}, dyn=dyn, stamp=(u in (1, 27) and not dyn))

    def sm_hook(self, u, end=None, whole=False):
        def hook(tl, seg):
            tl.spread("sm", self.softmax((u - 1) & 1)[-self.a.cut:], seg["p0"], seg["p1"] - 2)
            br, ladd = self.check(tl, (u - 1) & 1, [seg["tail"][-1]["m"][-1]], seg["p1"])
            sm = self.softmax(u & 1)
            if not whole:
                sm = sm[:-self.a.cut]
            tl.spread("sm", ladd + sm, seg["p1"], end(seg) if end else seg["end"])
            return [br]
        return hook

    def init(self):
        a = self.a
        L = f"""s_cmp_ge_u32 s2, 256
s_cbranch_scc1 L_end
s_load_dwordx16 s[44:59], s[0:1], 0
s_load_dwordx4 s[60:63], s[0:1], 64
s_load_dwordx2 s[64:65], s[0:1], 96
v_lshrrev_b32 v1, 6, v0
v_and_b32 v2, 63, v0
v_readfirstlane_b32 s3, v1
s_and_b32 s4, s2, 7
s_lshr_b32 s5, s2, 3
s_lshr_b32 s6, s4, 2
s_and_b32 s4, s4, 3
s_lshl_b32 s4, s4, 2
s_lshr_b32 s7, s5, 3
s_add_u32 s4, s4, s7
s_and_b32 s7, s5, 7
s_lshl_b32 s{sW4}, s3, 12
v_lshrrev_b32 v3, 5, v2
v_and_b32 v4, 31, v2
v_and_b32 v5, 1, v1
v_lshlrev_b32 v5, 3, v5
v_lshl_or_b32 v5, v3, 1, v5
v_xor_b32 v6, v4, v5
v_xor_b32 v7, 4, v6
v_lshl_add_u32 v8, v1, 3, v3
v_lshlrev_b32 v9, 13, v8
v_lshl_add_u32 v{oWq}, v6, 4, v9
v_lshl_add_u32 v{oWq + 1}, v7, 4, v9
v_add_u32 v{oWq + 1}, {2 * 8192 - 2048}, v{oWq + 1}
v_and_b32 v10, 15, v2
v_lshrrev_b32 v11, 4, v2
v_mul_u32_u24 v12, 48, v1
v_add_u32 v12, v12, v10
v_mul_u32_u24 v12, 896, v12
v_lshl_add_u32 v{vX}, v11, 4, v12
v_add_u32 v{vX + 1}, {16 * 896}, v{vX}
v_add_u32 v{vX + 2}, {32 * 896}, v{vX}
s_waitcnt lgkmcnt(0)
s_cmp_eq_u32 s6, 0
s_cselect_b64 s[{SRD_X}:{SRD_X + 1}], s[44:45], s[54:55]
s_cselect_b64 s[{SRD_K}:{SRD_K + 1}], s[46:47], s[56:57]
s_cselect_b64 s[{SRD_V}:{SRD_V + 1}], s[48:49], s[58:59]
s_cselect_b64 s[{SRD_WQ}:{SRD_WQ + 1}], s[50:51], s[60:61]
s_cselect_b64 s[{SRD_WO}:{SRD_WO + 1}], s[52:53], s[62:63]
s_mul_i32 s44, s7, 172032
s_add_u32 s{SRD_X}, s{SRD_X}, s44
s_addc_u32 s{SRD_X + 1}, s{SRD_X + 1}, 0
s_mov_b32 s{SRD_X + 2}, 172032
s_mov_b32 s{SRD_X + 3}, 0x20000
s_lshl_b32 s44, s4, 9
s_add_u32 s{SRD_WQ}, s{SRD_WQ}, s44
s_addc_u32 s{SRD_WQ + 1}, s{SRD_WQ + 1}, 0
s_mov_b32 s{SRD_WQ + 2}, {447 * 8192 + 512}
s_mov_b32 s{SRD_WQ + 3}, 0x20000""".split("\n")
        L = [I(x) for x in L]
        L[2:2] = self.stamp()[:2]
        kv = f"""s_lshl_b32 s44, s7, 4
s_add_u32 s44, s44, s4
s_lshl_b32 s45, s44, 19
s_add_u32 s{SRD_K}, s{SRD_K}, s45
s_addc_u32 s{SRD_K + 1}, s{SRD_K + 1}, 0
s_mov_b32 s{SRD_K + 2}, 0x80000
s_mov_b32 s{SRD_K + 3}, 0x20000
s_add_u32 s{SRD_V}, s{SRD_V}, s45
s_addc_u32 s{SRD_V + 1}, s{SRD_V + 1}, 0
s_mov_b32 s{SRD_V + 2}, 0x80000
s_mov_b32 s{SRD_V + 3}, 0x20000
s_lshl_b32 s{sK}, s5, 14
s_and_b32 s{sK}, s{sK}, {0x7ffff if a.rot else 0}
s_mov_b32 s{sV}, s{sK}
v_lshlrev_b32 v9, 9, v8
v_lshl_add_u32 v{oV}, v6, 4, v9
v_lshl_add_u32 v{oV + 1}, v7, 4, v9
v_lshl_or_b32 v12, v1, 2, v3
v_xor_b32 v12, v4, v12
v_xor_b32 v13, 2, v12
v_lshl_add_u32 v{oK}, v12, 4, v9
v_lshl_add_u32 v{oK + 1}, v13, 4, v9""".split("\n")
        rest = f"""s_mul_i32 s45, s4, 229376
s_add_u32 s{SRD_WO}, s{SRD_WO}, s45
s_addc_u32 s{SRD_WO + 1}, s{SRD_WO + 1}, 0
s_sub_u32 s{SRD_WO}, s{SRD_WO}, 4096
s_subb_u32 s{SRD_WO + 1}, s{SRD_WO + 1}, 0
s_mov_b32 s{SRD_WO + 2}, {229376 + 4096}
s_mov_b32 s{SRD_WO + 3}, 0x20000
s_lshl_b32 s45, s6, 7
s_add_u32 s44, s44, s45
s_mul_i32 s44, s44, 172032
s_add_u32 s{SRD_WS}, s64, s44
s_addc_u32 s{SRD_WS + 1}, s65, 0
s_mov_b32 s{SRD_WS + 2}, 172032
s_mov_b32 s{SRD_WS + 3}, 0x20000
s_mov_b32 s{sPos}, 0x8000
s_mov_b32 s{sNeg}, 0xfffe0000
s_mov_b32 s{sC}, {f32(1.4426950408889634 / 16)}
v_lshl_add_u32 v13, v1, 2, v3
v_lshrrev_b32 v14, 3, v6
v_lshl_add_u32 v14, v14, 5, v13
v_mul_u32_u24 v14, 896, v14
v_and_b32 v15, 7, v6
v_lshl_add_u32 v15, v15, 4, v14
v_add_u32 v{oWo}, 4096, v15
v_and_b32 v15, 7, v7
v_lshl_add_u32 v15, v15, 4, v14
v_add_u32 v{oWo + 1}, {4096 + 2 * 896 - 2048}, v15
v_mul_u32_u24 v13, 6144, v1
v_lshl_add_u32 v{oSt}, v2, 4, v13
v_lshrrev_b32 v13, 1, v10
v_and_b32 v14, 1, v10
v_lshl_add_u32 v13, v13, 2, v14
v_lshlrev_b32 v13, 9, v13
v_and_b32 v14, 1, v11
v_lshrrev_b32 v15, 1, v11
v_lshl_or_b32 v15, v14, 1, v15
v_xor_b32 v15, v15, v10
v_lshl_add_u32 v13, v15, 4, v13
v_add_u32 v{aK}, {self.slot(7) * 32768}, v13
v_xor_b32 v{aK + 1}, 64, v{aK}
v_xor_b32 v{aK + 2}, 128, v{aK}
v_xor_b32 v{aK + 3}, 192, v{aK}
v_bfe_u32 v13, v2, 3, 1
v_bfe_u32 v15, v2, 2, 1
v_lshlrev_b32 v16, 3, v11
v_lshl_add_u32 v16, v13, 2, v16
v_add_u32 v16, v16, v15
v_lshlrev_b32 v16, 9, v16
v_lshlrev_b32 v17, 3, v14
v_lshl_or_b32 v17, v13, 2, v17
v_lshl_or_b32 v17, v15, 1, v17
v_bfe_u32 v18, v2, 1, 1
v_or_b32 v17, v17, v18
v_lshl_add_u32 v16, v17, 4, v16
v_and_b32 v18, 1, v2
v_lshl_add_u32 v16, v18, 3, v16
v_add_u32 v{aV}, {self.slot(0) * 32768}, v16""".split("\n")
        rest += [f"v_xor_b32 v{aV + i}, {32 * i}, v{aV}" for i in range(1, 8)]
        rest += [f"v_mov_b32 v{vL + qb}, 0" for qb in range(3)]
        rest += [f"v_accvgpr_write_b32 a{i}, 0" for i in range(168, 192)]
        for n in range(4):
            L += self.xload(2 * n) + self.xload(2 * n + 1) + self.fill(n)
        L += [I(x) for x in kv + rest]
        for x in L:
            self.cnt.see(x)
        return L

    def qproj(self, tl):
        prev = None
        for n in range(7):
            order = [(hs, db) for hs in range(2) for db in range(16)]
            if n == 6:
                order = [(hs, db) for db in range(16) for hs in range(2)]
            frags = []
            for hs, db in order:
                ks = 2 * n + hs
                f = self.tfrag(hs, db, lambda qb, db=db: R("v", QA(db, qb), 4), lambda qb, ks=ks: R("a", QB(ks, qb), 4), czero=(ks == 0))
                f["key"] = (hs, db)
                frags.append(f)
            seg = self.segment(tl, n, frags, upd="V", stamp=(n == 0), xneed=(2 * n, 2 * n + 1))
            if n < 3:
                tl.spread("x", self.xload(8 + 2 * n) + self.xload(9 + 2 * n), seg["p0"] + 4, seg["end"] - 20)
            if n:
                z = [f"v_accvgpr_write_b32 a{i}, 0" for i in range(24 * (n - 1), 24 * n)]
                tl.spread("z", z, seg["p1"] + 1, seg["end"] - 40 * (n == 6), deps=[seg["tail"][-1]["m"][-1]])
        self.qlast = {f["key"]: f for f in frags}

    def qconv(self, tl):
        items = {}
        for ks in range(8):
            for qb in range(3):
                s, d = QA(2 * ks, qb), QB(ks, qb)
                L = [f"v_mul_f32 v{s + i}, s{sC}, v{s + i}" for i in range(8)]
                L += [f"v_cvt_pk_bf16_f32 v{d + i}, v{s + 2 * i}, v{s + 2 * i + 1}" for i in range(4)]
                items[ks, qb] = L
        out, last = [], {}
        for ks in range(8):
            f = self.qlast[1, 2 * ks + 1]
            L = [I(x) for qb in range(3) for x in items[ks, qb]]
            L += [I(f"v_permlane16_swap_b32 v{QB(ks, qb) + i}, v{QB(ks, qb) + 2 + i}") for qb in range(3) for i in range(2)]
            for x in L:
                tl.add("cv", x, f["pos"] + 6, deps=[f["m"][-1]])
            last[ks] = L[-1]
        return last

    def first(self, tl):
        fr = [self.kfrag(0, 0, j, ks, czero=True) for j in range(2) for ks in range(8)]
        fr += [self.kfrag(1, 1, j, ks) for j in range(2) for ks in range(8)]
        st = {}

        def h0(tl, seg):
            st["cv"] = self.qconv(tl)
            z = [f"v_accvgpr_write_b32 a{i}, 0" for i in range(144, 168)]
            tl.spread("z", z, seg["p1"] + 6, seg["p1"] + 40, deps=[seg["tail"][-1]["m"][-1]])
            return [st["cv"][7]]

        def h16(tl, seg):
            m, mx = self.tilemax(0)
            m += [f"v_sub_f32 v{vNm + qb * 4 + r}, 0, v{mx[qb]}" for qb in range(3) for r in range(4)]
            it = [tl.add("sm", x, tl.pos(), deps=[fr[15]["m"][-1]]) for x in m]
            sub = [I(f"v_sub_f32 v{S(0, j, qb) + r}, v{S(0, j, qb) + r}, v{mx[qb]}") for j in range(2) for qb in range(3) for r in range(4)]
            tl.spread("sm", sub + self.softmax(0)[:-self.a.cut], tl.pos(), seg["end"])
            return [it[-1]]
        seg = self.segment(tl, 7, fr, hooks={0: h0, 16: h16}, stamp=True)
        ini = [f"s_add_u32 s{sCur}, s{sW4}, {self.slot(8) * 32768}", f"s_add_u32 s{sPrev}, s{sW4}, {self.slot(7) * 32768}", f"s_mov_b32 s{sCnt}, {self.a.trips}"]
        tl.spread("dma", ini, seg["end"] - 6, seg["end"] - 1)

    def final(self, tl):
        fr = [self.vfrag(0, 0, db) for db in range(16)] + [self.vfrag(1, 1, db) for db in range(16)]

        def h16(tl, seg):
            br, ladd = self.check(tl, 1, [fr[15]["m"][-1]], tl.pos())
            ls = [vL + qb for qb in range(3)]
            fin = self.xmax(ls, "v_add_f32") + [f"v_rcp_f32 v{r}, v{r}" for r in ls]
            self.linv = tl.spread("sm", ladd + fin, tl.pos(), tl.pos() + 16)[-1]
            return [br]
        self.segment(tl, 38, fr, hooks={0: self.sm_hook(31, end=lambda s: s["p1"] + 46, whole=True), 16: h16}, upd="V")
        pv = fr[16:]
        st = {}

        def oconv(tl, seg):
            for ks in range(8):
                f = pv[2 * ks + 1]
                for qb in range(3):
                    t = vE + 8 * ((ks * 3 + qb) & 1)
                    L = [f"v_accvgpr_read_b32 v{t + 4 * b + r}, a{O(2 * ks + b, qb) + r}" for b in range(2) for r in range(4)]
                    L += [f"v_cvt_pk_bf16_f32 v{QB(ks, qb) + i}, v{t + 2 * i}, v{t + 2 * i + 1}" for i in range(4)]
                    for x in L:
                        st[ks, qb] = tl.add("cv", x, f["pos"] + 6, deps=[f["m"][-1], self.linv])
            return []

        def epi(tl, nc, hf, fl, lo, hi):
            L = []
            for qb in range(3):
                b = ACC(nc & 1, qb, 2 * hf)
                M = [I(f"v_mul_f32 v{b + i}, v{vL + qb}, v{b + i}") for i in range(8)]
                M += [I(f"v_cvt_pk_bf16_f32 v{b + i}, v{b + 2 * i}, v{b + 2 * i + 1}") for i in range(4)]
                M += [I(f"s_mov_b32 s{sSt0}, {nc * 24576 + qb * 2048 + hf * 1024}")]
                M += [I(f"buffer_store_dwordx4 {R('v', b, 4)}, v{oSt}, {srd(SRD_WS)}, s{sSt0} offen {self.a.stfl}")]
                L += M
            tl.spread("ep", L, lo, hi, deps=[fl["m"][-1]])
            return L

        pend = []
        for nc in range(7):
            order = [(ks, nb) for ks in range(8) for nb in range(4)] if nc == 0 else [(ks, nb) for nb in range(4) for ks in range(8)]
            frags = []
            for ks, nb in order:
                f = self.tfrag(ks >> 2, (ks & 3) * 4 + nb, lambda qb, nb=nb, nc=nc: R("v", ACC(nc & 1, qb, nb), 4),
                               lambda qb, ks=ks: R("v", QB(ks, qb), 4), czero=(ks == 0))
                frags.append(f)
            hooks = {}
            if nc == 0:
                def h0(tl, seg):
                    oconv(tl, seg)
                    for (ks, nb), f in zip(order, frags):
                        f["needs"] = [[st[ks, qb]] for qb in range(3)]
                    return []
                hooks[0] = h0
            else:
                def h0(tl, seg, nc=nc):
                    p = tl.pos() + 3
                    need = list(pend)
                    if nc == 1:
                        epi(tl, 0, 0, seg["tail"][-1], p, p + 30)
                        pend[:] = epi(tl, 0, 1, seg["tail"][-1], p + 30, p + 60)[-1:]
                    else:
                        pend[:] = epi(tl, nc - 1, 1, seg["tail"][-1], p, p + 45)[-1:]
                    return need

                def h16(tl, seg, nc=nc, frags=frags):
                    p = tl.pos() + 3
                    epi(tl, nc, 0, frags[15], p + 12 * (nc == 1), p + 45)
                    return []
                hooks = {0: h0, 16: h16}
            seg = self.segment(tl, 39 + nc, frags, hooks=hooks, upd="V", last=(nc == 6), stamp=(nc == 0))
        epi(tl, 6, 1, frags[-1], tl.pos(), tl.pos())

    def main_kernel(self):
        a = self.a
        pre = self.init()
        tl = Timeline(self.cnt)
        self.qproj(tl)
        self.first(tl)
        pre += tl.run(a.look)
        pre += self.stamp() and [I("s_waitcnt lgkmcnt(0)")] + [I(f"s_memrealtime s[{STAMP0 + 4 * self.nstamp - 4}:{STAMP0 + 4 * self.nstamp - 3}]"), I(f"s_memtime s[{STAMP0 + 4 * self.nstamp - 2}:{STAMP0 + 4 * self.nstamp - 1}]"), I("s_waitcnt lgkmcnt(0)")]
        tl = Timeline(self.cnt)
        self.steady(tl, 1, True)
        self.steady(tl, 2, True)
        e = tl.pos()
        tl.spread("dma", [f"s_sub_u32 s{sCnt}, s{sCnt}, 1", f"s_cmp_lg_u32 s{sCnt}, 0"], e - 3, e - 1)
        body = [I(".p2align 6"), I("L_loop:")] + tl.run(a.look) + [I("s_cbranch_scc1 L_loop")]
        shift = 2 * (a.trips - 1)
        self.cnt.vm = [I(x.text, tag=(x.tag[0], x.tag[1] + shift)) for x in self.cnt.vm]
        tl = Timeline(self.cnt)
        for u in range(2 * a.trips + 1, 31):
            self.steady(tl, u, False)
        self.final(tl)
        post = tl.run(a.look)
        if a.stamps:
            post += [I("s_waitcnt vmcnt(0)")] + self.stamp()
            post += [I(x) for x in f"""s_add_u32 s44, s64, 0xc800000
s_addc_u32 s45, s65, 0
s_mov_b32 s46, 0x10000
s_mov_b32 s47, 0x20000
s_lshl_b32 s3, s2, 8
v_mov_b32 v3, 0
v_cmp_eq_u32 vcc, 0, v{oSt}
s_and_saveexec_b64 s[48:49], vcc
s_cbranch_execz L_end""".split("\n")]
            for i in range(self.nstamp):
                post += [I(f"v_mov_b32 v{4 + j}, s{STAMP0 + 4 * i + j}") for j in range(4)]
                post += [I(f"buffer_store_dwordx4 v[4:7], v3, s[44:47], s3 offen offset:{16 * i}")]
        post += [I("L_end:"), I("s_endpgm")]
        blocks = [dict(code=pre), dict(code=body, count=a.trips, step=2), dict(code=post)]
        nn = fix_hazards(blocks)
        verify_waits(blocks)
        slow = []
        for k, p in enumerate(self.slow_sites):
            slow += [I(f"L_slow{k}:"), I(f"s_call_b64 s[{sRet}:{sRet + 1}], L_rescale{p}"), I(f"s_branch L_back{k}")]
        for p in range(2):
            r = self.slow_routine(p)
            fix_hazards([dict(code=r)])
            slow += r
        if a.v:
            print("nops", nn, "pre", stats(pre), "body", stats(body), "post", stats(post))
        return pre + body + post + slow

    def reduce_kernel(self):
        L = f"""s_cmp_ge_u32 s2, 336
s_cbranch_scc1 L_rend
s_load_dwordx2 s[4:5], s[0:1], 80
s_load_dwordx2 s[8:9], s[0:1], 96
v_lshrrev_b32 v1, 6, v0
v_and_b32 v2, 63, v0
v_readfirstlane_b32 s3, v1
s_mul_i32 s12, s2, 3121
s_lshr_b32 s12, s12, 16
s_mul_i32 s13, s12, 21
s_sub_u32 s13, s2, s13
s_lshl_b32 s13, s13, 2
s_add_u32 s13, s13, s3
s_mul_i32 s14, s12, {16 * 172032}
s_lshl_b32 s15, s13, 11
v_lshlrev_b32 v3, 4, v2
v_add_u32 v3, s15, v3
s_waitcnt lgkmcnt(0)
s_add_u32 s8, s8, s14
s_addc_u32 s9, s9, 0
s_mov_b32 s10, {16 * 172032}
s_mov_b32 s11, 0x20000
s_mov_b32 s6, {8 * 192 * 1792}
s_mov_b32 s7, 0x20000""".split("\n")
        for h in range(16):
            L.append(f"s_mov_b32 s16, {h * 172032}")
            for hf in range(2):
                b = 32 + h * 8 + hf * 4
                L.append(f"buffer_load_dwordx4 v[{b}:{b + 3}], v3, s[8:11], s16 offen offset:{hf * 1024} {self.a.rdfl}")
        L += f"""s_mul_i32 s16, s13, 5462
s_lshr_b32 s16, s16, 16
s_mul_i32 s17, s16, 12
s_sub_u32 s17, s13, s17
s_and_b32 s18, s12, 7
s_mul_i32 s18, s18, 192
s_lshl_b32 s17, s17, 4
s_add_u32 s18, s18, s17
s_mul_i32 s18, s18, 1792
s_lshr_b32 s19, s12, 3
s_mul_i32 s19, s19, 896
s_add_u32 s18, s18, s19
s_lshl_b32 s16, s16, 7
s_add_u32 s18, s18, s16
v_and_b32 v4, 15, v2
v_mul_u32_u24 v4, 1792, v4
v_bfe_u32 v5, v2, 4, 1
v_lshrrev_b32 v6, 5, v2
v_lshl_or_b32 v5, v5, 1, v6
v_lshl_add_u32 v4, v5, 4, v4""".split("\n")
        for h in range(16):
            L.append(f"s_waitcnt vmcnt({30 - 2 * h})")
            for i in range(8):
                r = 32 + h * 8 + i
                if h == 0:
                    L += [f"v_lshlrev_b32 v{8 + 2 * i}, 16, v{r}", f"v_and_b32 v{9 + 2 * i}, 0xffff0000, v{r}"]
                else:
                    L += [f"v_lshlrev_b32 v24, 16, v{r}", f"v_and_b32 v25, 0xffff0000, v{r}",
                          f"v_add_f32 v{8 + 2 * i}, v{8 + 2 * i}, v24", f"v_add_f32 v{9 + 2 * i}, v{9 + 2 * i}, v25"]
        L += [f"v_cvt_pk_bf16_f32 v{24 + i}, v{8 + 2 * i}, v{9 + 2 * i}" for i in range(8)]
        L += [f"v_permlane16_swap_b32 v{24 + 4 * hf + i}, v{26 + 4 * hf + i}" for hf in range(2) for i in range(2)]
        L += [f"buffer_store_dwordx4 v[{24 + 4 * hf}:{27 + 4 * hf}], v4, s[4:7], s18 offen offset:{64 * hf}" for hf in range(2)]
        L += ["L_rend:", "s_endpgm"]
        c = [I(x) for x in L]
        fix_hazards([dict(code=c)])
        verify_waits([dict(code=c)])
        return c


def kd(name, vg, acc):
    return f""".amdhsa_kernel {name}
  .amdhsa_next_free_vgpr {vg}
  .amdhsa_next_free_sgpr 102
  .amdhsa_accum_offset {acc}
  .amdhsa_group_segment_fixed_size 0
  .amdhsa_kernarg_size 104
  .amdhsa_user_sgpr_count 2
  .amdhsa_user_sgpr_kernarg_segment_ptr 1
  .amdhsa_system_sgpr_workgroup_id_x 1
.end_amdhsa_kernel
"""


def text(code):
    return "".join(("" if x.kind == "label" else "    ") + x.text.rstrip() + "\n" for x in code)


def build(a):
    g = Gen(a)
    head = "".join(l for l in open(f"cdna_kernels/{NAME}.s.ref") if l.startswith(";   offset") or l.startswith("; Kernarg"))
    s = head
    s += f"; @launch kernel={NAME}_kernel grid=(256,1,1) block=(256,1,1) lds=163840\n"
    s += "; @launch kernel=reduce_heads_kernel grid=(336,1,1) block=(256,1,1) lds=0\n"
    s += '.amdgcn_target "amdgcn-amd-amdhsa--gfx950"\n.text\n'
    for nm, code in ((NAME + "_kernel", g.main_kernel()), ("reduce_heads_kernel", g.reduce_kernel())):
        s += f".globl {nm}\n.p2align 8\n.type {nm},@function\n{nm}:\n" + text(code)
    s += '.section .rodata,"a"\n.p2align 6\n' + kd(NAME + "_kernel", 512, 256) + ".p2align 6\n" + kd("reduce_heads_kernel", 160, 160)
    return s


def parser():
    ap = argparse.ArgumentParser()
    ap.add_argument("-o", default="k.s")
    ap.add_argument("-v", action="store_true")
    ap.add_argument("--stamps", action="store_true")
    ap.add_argument("--rot", type=int, default=1)
    ap.add_argument("--kvfl", default="nt")
    ap.add_argument("--wfl", default="")
    ap.add_argument("--xfl", default="")
    ap.add_argument("--stfl", default="")
    ap.add_argument("--rdfl", default="")
    ap.add_argument("--X", type=int, default=5)
    ap.add_argument("--Y", type=int, default=3)
    ap.add_argument("--cut", type=int, default=10)
    ap.add_argument("--look", type=int, default=10)
    ap.add_argument("--trips", type=int, default=13)
    ap.add_argument("--thr", type=float, default=4096.0)
    ap.add_argument("--dmaspan", type=float, default=0.7)
    return ap


if __name__ == "__main__":
    a = parser().parse_args()
    open(a.o, "w").write(build(a))
```

```python
import re

TRANS = ("v_exp_f32", "v_log_f32", "v_rcp_f32", "v_rsq_f32", "v_sqrt_f32")
_REG = re.compile(r"^-?([vas])(\d+)$")
_RNG = re.compile(r"^-?([vas])\[(\d+):(\d+)\]$")


def regs_of(op):
    op = op.strip()
    m = _REG.match(op)
    if m:
        return [m.group(1) + m.group(2)]
    m = _RNG.match(op)
    if m:
        return [m.group(1) + str(i) for i in range(int(m.group(2)), int(m.group(3)) + 1)]
    if op in ("vcc", "m0", "exec"):
        return [op]
    return []


def R(f, i, n=1):
    return f"{f}{i}" if n == 1 else f"{f}[{i}:{i + n - 1}]"


class I:
    def __init__(self, text, tag=None):
        self.text = text
        self.tag = tag
        self.deps = []
        self.done = False
        self.target = 0
        self.srcc = []
        self.ab = []
        t = text.split(";")[0].strip()
        if t.endswith(":") or t.startswith("."):
            self.kind, self.rd, self.wr, self.mn = "label", [], [], t
            return
        parts = t.split(None, 1)
        mn = self.mn = parts[0]
        ops = []
        if len(parts) > 1:
            ops = [o.strip() for o in re.sub(r"op_sel\S*", "", parts[1]).split(",")]
            last = ops[-1].split()
            ops[-1] = last[0]
            self.mods = last[1:]
        else:
            self.mods = []
        rs = [regs_of(o) for o in ops]
        flat = lambda l: [x for y in l for x in y]
        if mn.startswith("v_mfma"):
            self.kind, self.wr, self.rd = "mfma", rs[0], flat(rs[1:])
            self.srcc, self.ab = rs[3], rs[1] + rs[2]
        elif mn.startswith("v_permlane"):
            self.kind, self.wr, self.rd = "valu", flat(rs), flat(rs)
        elif mn.startswith("v_add_co") or mn.startswith("v_addc_co"):
            self.kind, self.wr, self.rd = "valu", rs[0] + rs[1], flat(rs[2:])
        elif mn.startswith("v_cndmask"):
            self.kind, self.wr, self.rd = "valu", rs[0], flat(rs[1:])
        elif mn.startswith("v_"):
            self.kind = "trans" if mn.replace("_e32", "").replace("_e64", "") in TRANS else "valu"
            self.wr, self.rd = rs[0], flat(rs[1:])
            if mn.startswith("v_fmac"):
                self.rd = self.rd + rs[0]
        elif mn.startswith("ds_read"):
            self.kind, self.wr, self.rd = "ds", rs[0], flat(rs[1:])
        elif mn.startswith("ds_"):
            self.kind, self.wr, self.rd = "ds", [], flat(rs)
        elif mn.startswith("buffer_load") or mn.startswith("global_load"):
            self.kind = "vmem"
            if "lds" in self.mods:
                self.wr, self.rd = [], flat(rs) + ["m0"]
            else:
                self.wr, self.rd = rs[0], flat(rs[1:])
        elif mn.startswith("buffer_atomic") or mn.startswith("global_atomic"):
            self.kind, self.rd = "vmem", flat(rs)
            self.wr = rs[0] if "sc0" in self.mods else []
        elif mn.startswith("buffer_") or mn.startswith("global_"):
            self.kind, self.wr, self.rd = "vmem", [], flat(rs)
        elif mn == "s_waitcnt":
            self.kind, self.wr, self.rd = "wait", [], []
            m = re.search(r"vmcnt\((\d+)\)", t)
            self.vm = int(m.group(1)) if m else None
            m = re.search(r"lgkmcnt\((\d+)\)", t)
            self.lg = int(m.group(1)) if m else None
        elif mn == "s_barrier":
            self.kind, self.wr, self.rd = "bar", [], []
        elif mn in ("s_nop", "s_sleep", "s_setprio", "s_endpgm"):
            self.kind, self.wr, self.rd = "salu", [], []
        elif mn.startswith("s_cbranch") or mn in ("s_branch", "s_setpc_b64", "s_call_b64"):
            self.kind, self.wr, self.rd = "branch", [], []
        elif mn.startswith("s_load") or mn.startswith("s_mem") or mn.startswith("s_atomic"):
            self.kind, self.wr, self.rd = "smem", rs[0], flat(rs[1:])
        elif mn.startswith("s_cmp") or mn.startswith("s_bitcmp"):
            self.kind, self.wr, self.rd = "salu", [], flat(rs)
        elif mn.startswith("s_"):
            self.kind, self.wr, self.rd = "salu", rs[0], flat(rs[1:])
        else:
            raise ValueError(text)

    @property
    def states(self):
        if self.kind == "label":
            return 0
        if self.mn == "s_nop":
            return int(self.text.split()[1]) + 1
        return 1

    @property
    def vec_cost(self):
        if self.kind == "trans" or self.mn.startswith("v_permlane"):
            return 2
        if self.kind == "label":
            return 0
        return 1

    @property
    def scalar(self):
        return self.kind in ("salu", "wait", "bar", "branch", "smem")


class Counters:
    def __init__(self):
        self.ds = []
        self.vm = []

    def see(self, ins):
        if ins.kind == "ds":
            self.ds.append(ins)
        elif ins.kind == "vmem":
            self.vm.append(ins)
        elif ins.kind == "wait":
            if ins.lg is not None:
                self.ds = self.ds[max(0, len(self.ds) - ins.lg):] if ins.lg else []
                assert len(self.ds) <= ins.lg
            if ins.vm is not None:
                self.vm = self.vm[max(0, len(self.vm) - ins.vm):] if ins.vm else []

    def need(self, q, pred):
        last = None
        for k, x in enumerate(q):
            if pred(x):
                last = k
        return None if last is None else len(q) - 1 - last


class Lazy:
    def __init__(self, fn):
        self.fn = fn
        self.deps = []
        self.done = False
        self.target = 0
        self.scalar = True
        self.vec_cost = 1
        self.kind = "lazy"


PRIO = {"rx": 0, "rd": 1, "rg": 0, "fl": 0, "st": 0, "dma": 2}


class Timeline:
    def __init__(self, cnt):
        self.cnt = cnt
        self.mf = []
        self.streams = {}
        self.out = []
        self.age = {}

    def pos(self):
        return len(self.mf)

    def mfma(self, text, needs=(), frag=None):
        m = I(text)
        m.needs = list(needs)
        m.frag = frag
        self.mf.append(m)
        return m

    def add(self, stream, item, target, deps=()):
        if isinstance(item, str):
            item = I(item)
        item.target = target
        item.deps = list(deps)
        item.stream = stream
        self.streams.setdefault(stream, []).append(item)
        return item

    def spread(self, stream, items, lo, hi, deps=()):
        items = [I(x) if isinstance(x, str) else x for x in items]
        tot = sum(x.vec_cost for x in items) or 1
        acc = 0
        for x in items:
            self.add(stream, x, lo + (hi - lo) * acc / tot, list(x.deps) + list(deps))
            acc += x.vec_cost
        return items

    def _put(self, ins):
        self.out.append(ins)
        self.cnt.see(ins)
        if ins.kind == "ds":
            self.age[id(ins)] = self.k

    def _emit(self, item):
        s = self.streams[item.stream]
        assert s[0] is item
        s.pop(0)
        item.done = True
        item.at = self.k
        if isinstance(item, Lazy):
            for x in item.fn(self.cnt):
                self._put(x)
        else:
            for x in getattr(item, "pre", []) + [item] + getattr(item, "post", []):
                self._put(x)

    def _force(self, item):
        if item.done:
            return
        assert item.kind != "mfma", "forced item depends on a later MFMA: " + item.text
        s = self.streams[item.stream]
        while not item.done:
            h = s[0]
            for d in h.deps:
                self._force(d)
            self._emit(h)

    def _frag_wait(self, m, lookahead):
        rd = set(m.rd)
        n = self.cnt.need(self.cnt.ds, lambda x: rd & set(x.wr))
        if n is None:
            return False
        n2 = self.cnt.need(self.cnt.ds, lambda x: self.k - self.age.get(id(x), -99) >= lookahead)
        if n2 is not None:
            n = min(n, n2)
        self._put(I(f"s_waitcnt lgkmcnt({min(n, 15)})"))
        return True

    def run(self, lookahead=10, pull=2.0, bias=0.0, sclate=2.0, vlate=0):
        self.k = 0
        self.vlate = vlate
        self.pull, self.bias, self.sclate, self.memlate = pull, bias, sclate, 3.0
        n = len(self.mf)
        for k in range(n + 1):
            self.k = k
            nxt = self.mf[k] if k < n else None
            free_scalar = k > 0
            budget = 2
            if nxt is not None and all(d.done for d in nxt.needs):
                if self._frag_wait(nxt, lookahead):
                    free_scalar = False
            first_vec = True
            while True:
                ready = [s[0] for s in self.streams.values() if s and all(d.done for d in s[0].deps)
                         and all(d.done and k >= d.at + dl for d, dl in getattr(s[0], "after", []))]
                due = [h for h in ready if h.target <= k]
                sc = [h for h in due if h.scalar]
                if free_scalar and sc:
                    self._emit(min(sc, key=lambda h: h.target))
                    free_scalar = False
                    continue
                free_scalar = False
                mem = [h for h in due if h.kind in ("ds", "vmem")]
                big = [h for h in due if h.vec_cost == 2]
                plain = [h for h in due if h.kind in ("valu", "label") and h.vec_cost < 2]
                late = [h for h in sc if h.target <= k - self.sclate or h.kind == "lazy"]
                pick = None
                if first_vec and (mem or big):
                    m = min(mem, key=lambda h: (PRIO.get(h.stream, 9), h.target)) if mem else None
                    b = min(big, key=lambda h: h.target) if big else None
                    pick = b if (m is None or (b is not None and b.target + self.bias < m.target)) else m
                if pick is None and budget == 1 and self.out[-1].kind in ("ds", "vmem"):
                    lm = [h for h in mem if h.target <= k - self.memlate]
                    if lm:
                        pick = min(lm, key=lambda h: h.target)
                if pick is None and budget >= 1:
                    if not plain and not first_vec:
                        plain = [h for h in ready if h.kind == "valu" and h.vec_cost < 2 and h.target <= k + self.pull]
                    cand = plain + late
                    if cand:
                        pick = min(cand, key=lambda h: (PRIO.get(h.stream, 9), h.target))
                if pick is None and budget == 0 and self.vlate:
                    cand = [h for h in plain if h.stream in ("ep", "cv") and h.target <= k - self.vlate and getattr(h, "over", True)]
                    if cand:
                        pick = min(cand, key=lambda h: h.target)
                if pick is None:
                    break
                if pick.kind != "lazy":
                    budget -= pick.vec_cost
                    first_vec = False
                self._emit(pick)
            if nxt is None:
                break
            for d in nxt.needs:
                self._force(d)
            self._frag_wait(nxt, lookahead)
            nxt.done = True
            self._put(nxt)
        rest = sorted((x for s in self.streams.values() for x in s), key=lambda x: x.target)
        for x in rest:
            self._force(x)
        return self.out


def need_states(p, c):
    pw, need = set(p.wr), 0
    crd, cwr = set(c.rd), set(c.wr)
    vec = ("valu", "trans")
    if p.kind == "mfma":
        if c.kind == "mfma":
            if pw & set(c.ab):
                need = 8
            elif pw & set(c.srcc) and p.wr != c.srcc:
                need = 6
            elif pw & cwr and p.wr != c.srcc:
                need = 8
        elif c.kind in vec + ("ds", "vmem"):
            if pw & (crd | cwr):
                need = 8
        if c.kind in vec and set(p.srcc) & cwr:
            need = max(need, 3)
    elif p.kind in vec:
        vw = {r for r in pw if r[0] in "va" and r != "vcc"}
        sw = pw - vw
        if c.kind == "mfma" and vw & crd:
            need = 2
        if c.mn.startswith("v_permlane") and vw & crd:
            need = 2
        if c.mn.startswith("v_read") and vw & crd:
            need = max(need, 1)
        if p.kind == "trans" and c.kind != "mfma" and vw & crd:
            need = max(need, 1)
        if c.kind in vec and sw & crd:
            need = max(need, 2)
        if c.kind == "vmem" and sw & crd:
            need = max(need, 5)
    elif p.kind == "salu":
        if "m0" in pw and c.kind == "vmem" and "m0" in crd:
            need = 1
    elif p.kind == "vmem":
        if "store" in p.mn and ("x4" in p.mn or "x3" in p.mn) and set(p.rd) & cwr:
            need = 2
    return need


def flatten(blocks):
    tr = []
    for b in blocks:
        for _ in range(b.get("count", 1)):
            tr += [(x, b["code"]) for x in b["code"]]
    return tr


def fix_hazards(blocks, maxreps=2):
    total = 0
    while True:
        tr = flatten([dict(b, count=min(b.get("count", 1), maxreps)) for b in blocks])
        fixed = False
        for i, (c, home) in enumerate(tr):
            if c.kind in ("label", "wait", "bar", "branch"):
                continue
            dist, j, short = 0, i - 1, 0
            while j >= 0 and dist < 8:
                p = tr[j][0]
                short = max(short, need_states(p, c) - dist)
                dist += p.states
                j -= 1
            if short > 0:
                k = next(n for n, x in enumerate(home) if x is c)
                home.insert(k, I(f"s_nop {short - 1}"))
                total += 1
                fixed = True
                break
        if not fixed:
            return total


def verify_waits(blocks):
    cnt = Counters()
    fid = {}
    for b in blocks:
        for it in range(b.get("count", 1)):
            off = it * b.get("step", 0)
            for x in b["code"]:
                touch = set(x.rd) | set(x.wr)
                for q, nm in ((cnt.ds, "ds"), (cnt.vm, "vm")):
                    for y in q:
                        if set(y.wr) & touch and not (y.kind == x.kind and not set(y.wr) & set(x.rd)):
                            raise AssertionError(f"{nm} result not waited: {y.text} -> {x.text}")
                if x.kind == "bar" and x.tag:
                    assert not cnt.ds, "DS reads outstanding at a ring barrier"
                    for n in range(x.tag[1] + off, x.tag[3] + off + 1):
                        assert fid.get(("n", n), 0) == x.tag[2], f"barrier {n}: fill has {fid.get(('n', n), 0)} DMAs"
                        assert not any(fid.get(id(y)) == n for y in cnt.vm), f"barrier {n}: fill not landed"
                z = x
                if x.kind == "vmem" and x.tag and x.tag[0] == "fill":
                    z = I(x.text)
                    fid[id(z)] = x.tag[1] + off
                    fid[("keep", id(z))] = z
                    fid[("n", x.tag[1] + off)] = fid.get(("n", x.tag[1] + off), 0) + 1
                cnt.see(z)


def stats(code):
    cyc, gap, first, h, prev = 0, None, True, {}, None
    for x in code:
        h[x.kind] = h.get(x.kind, 0) + 1
        if x.kind == "label":
            continue
        if x.kind == "mfma":
            if gap is not None:
                cyc += max(16, gap)
            gap, first = 8, True
            continue
        c = 4 * (x.states if x.mn == "s_nop" else x.vec_cost)
        if gap is None:
            cyc += c
        elif first and x.scalar:
            gap += c - 4
        else:
            if x.kind in ("ds", "vmem") and gap > 8:
                c += 4 if prev in ("ds", "vmem") else 8
            gap += c
        first = False
        prev = x.kind
    if gap is not None:
        cyc += max(16, gap)
    return cyc, h


def sizes(code, head):
    import os, subprocess, tempfile
    d = tempfile.mkdtemp()
    src = head + "".join(x.text + "\n" for x in code if not x.text.startswith("."))
    open(d + "/a.s", "w").write(src)
    subprocess.run(["clang", "-x", "assembler", "-target", "amdgcn-amd-amdhsa", "-mcpu=gfx950", "-c", d + "/a.s", "-o", d + "/a.o"], check=True)
    out = subprocess.run(["llvm-objdump", "-d", "--mcpu=gfx950", d + "/a.o"], capture_output=True, text=True, check=True).stdout
    sz = [4 * len(l.split("//")[1].split(":")[1].split("<")[0].split()) for l in out.splitlines() if "//" in l]
    it = iter(sz)
    res = [0 if x.kind == "label" else next(it) for x in code]
    assert next(it, None) is None
    return res
```

```python
import argparse, re, struct
from asmlib import *

NAME = "concat_heads__mha_block_cached__gqa_block_cached__near_ridge"
f32 = lambda x: hex(struct.unpack("<I", struct.pack("<f", x))[0])

SRD_X, SRD_WQ, SRD_K, SRD_V, SRD_WO = 8, 12, 16, 20, 24
SRD_GRP, SRD_FLG, SRD_DBG, SRD_OUT = 68, 72, 80, 84
sMyR, sPrR, sMyF, sIds, sTo = 28, 60, 30, 31, 44
sPc, sSt, sD, sFb, sLo, sPv, sXcc, sSpin = 52, 56, 63, 76, 78, 79, 97, 67
sW4, sK, sV, sT0, sT1, sCur, sPrev, sDelta, sPos, sNeg, sCnt, sC = 32, 33, 34, 35, 36, 37, 38, 39, 40, 41, 42, 43
sSt0, sT2, sRet, sGw, sX2 = 4, 5, 6, 66, 29
sRq, sRb, sOo, sTk, sRk, sW8 = 88, 46, 62, 78, 76, 37
aK, aV, oK, oV, oWq, oWo, oSt = 192, 196, 204, 206, 208, 210, 212
vL, vT, aX, vE, vX, vTmp, vNm = 213, 216, 219, 220, 228, 232, 240
FRAG0 = 192
vCp = 254
aW = 194
aU = (217, 218, 234, 235)
vTw = 232
MF = "v_mfma_f32_16x16x32_bf16"
srd = lambda s: f"s[{s}:{s + 3}]"
S = lambda p, j, qb: 24 + p * 48 + (j * 3 + qb) * 4
P = lambda p, qb: 120 + p * 12 + qb * 4
O = lambda db, qb: (db * 3 + qb) * 4
QA = lambda db, qb: ((db >> 1) * 3 + qb) * 8 + (db & 1) * 4
QB = lambda ks, qb: 48 * (ks >> 1) + 12 * (ks & 1) + 4 * qb
XB = lambda ks, qb: (220, 224, 236, 240, 244, 248)[(ks & 1) * 3 + qb]
ACC = lambda t, qb, nb: 24 + 48 * (t & 3) + qb * 8 + nb * 4
IN = lambda r, qb: (220, 232, 196)[r % 3] + 4 * qb
vLn, vTd, vPoll, vFlag, vU = 208, 209, 244, 245, 246
NW, F0, FL, WO0, NEND = 14, 14, 45, 46, 52
HC = 12288
DSTR, QSTR, FBASE, RBASE, GSTR = 7 * 4096, 37 * 4096, 0x70000, 0x110000, 865 * 4096
FLAGOFF = 16 * GSTR


def II(txt):
    return [I(x) for x in txt.strip().split("\n")]


class Gen:
    def __init__(self, a):
        self.a = a
        self.cnt = Counters()
        self.fc = 0
        self.buf_last = {}
        self.tail = []
        self.slow_sites = []
        self.X, self.Y = a.X, a.Y
        self.nh = 0
        self.lastdma = None
        self.sched = [int(x) for x in a.sched.split(",")]
        self.qs = a.qs.split("|")
        assert len(self.qs) == 17
        self.nw = self.nx = self.nt = 0
        self.ool = []
        self.wdone = set()
        self.nr = self.nhop = 0
        self.wos = a.wos.split("|")

    def slot(self, n):
        nq = self.a.nq
        return 5 - nq + (n - NW) % nq if n < NW else (n - F0) % 5

    def ndma(self, n):
        return 7 if n < NW else 8

    def dma(self, n, voff, s, soff, imm, fl):
        fl = (fl + " ") if fl else ""
        return I(f"buffer_load_dwordx4 v{voff}, {srd(s)}, s{soff} offen offset:{imm} {fl}lds", tag=("fill", n))

    def half_kv(self, n, kind):
        s, vo, so = (SRD_K, oK, sK) if kind == "K" else (SRD_V, oV, sV)
        L = [self.dma(n, vo + x, s, so, x * 2048 + j * 1024, self.a.kvfl) for j in range(2) for x in range(2)]
        hole = 3 << (12 + self.a.ws)
        L += [I(f"s_add_u32 s{so}, s{so}, {hex(0x1000 + hole)}"), I(f"s_and_b32 s{so}, s{so}, {hex(0x7ffff & ~hole)}")]
        return [], L

    def half_w(self, n, s, vo, offs):
        pre = [I(f"s_mov_b32 s{sT0}, {offs[0]}"), I(f"s_mov_b32 s{sT1}, {offs[1]}")]
        return pre, [self.dma(n, vo + x, s, (sT0, sT1)[j], x * 2048 + j * 1024, self.a.wfl) for j in range(2) for x in range(2)]

    def role(self, t):
        c = self.a.ring[t]
        k = self.a.ring[:t].count(c)
        return (None, k) if c == "D" else (int(c), (k + self.a.krot) % 3)

    def col(self, t, dst, scale, base):
        st, k = self.role(t)
        if st is None:
            c = (768 + 64 * k) * scale
            return [I(f"s_mov_b32 s{dst}, {c}" if base is None else f"s_add_u32 s{dst}, s{base}, {c}")]
        L = [I(f"s_mul_i32 s{dst}, s{sPc + st}, {(128 if k else 64) * scale}"), I(f"s_add_u32 s{dst}, s{dst}, {(64 * (k - 1) if k else 512) * scale}")]
        return L + ([] if base is None else [I(f"s_add_u32 s{dst}, s{dst}, s{base}")])

    def wo_items(self, n, count):
        L = []
        for _ in range(count):
            todo = [t for t in range(14) if t not in self.wdone]
            if not todo or WO0 + (todo[0] >> 1) - 4 > n:
                break
            st, k = self.role(todo[0])
            want = (None, k ^ 1) if st is None else (st ^ 1, 0) if k == 0 else (st, 3 - k)
            ts = [todo[0]] + [t for t in todo[1:] if self.role(t) == want and WO0 + (t >> 1) - 4 <= n]
            regs = [(sT0, sT1), (92, 93)]
            for t, r in zip(ts, regs):
                L += self.col(t, r[0], 1, None) + [I(f"s_add_u32 s{r[1]}, s{r[0]}, {16 * 896 - 1024}")]
            for j in range(2):
                for x in range(2):
                    for t, r in zip(ts, regs):
                        m = WO0 + (t >> 1)
                        L += [I(f"s_add_u32 m0, s{sW4}, {self.slot(m) * 32768 + (t & 1) * 16384}"), self.dma(m, oWo + x, SRD_WO, r[j], x * 2048 + j * 1024, self.a.wfl)]
            self.wdone.update(ts)
            if self.a.v:
                print('seg', n - WO0, 'wo', ts)
        return L

    def fill_halves(self, n):
        H = []
        for hs in range(2):
            if n < NW and hs == 0:
                pre = [I(f"s_mov_b32 s{sT2}, {n * 64}")]
                d = [self.dma(n, vX + qb, SRD_X, sT2, qb * 1024, self.a.wfl) for qb in range(3)]
            elif n < NW:
                pre, d = self.half_w(n, SRD_WQ, oWq, [n * 262144 + j * (32768 - 1024) for j in range(2)])
            else:
                pre, d = self.half_kv(n, "KK" [hs] if n == F0 else "VV"[hs] if n == FL else "KV"[hs])
            m0 = f"s_add_u32 m0, s{sW4}, {self.slot(n) * 32768 + hs * 16384}"
            if n < NW and hs:
                m0 = f"s_add_u32 m0, s{sW8}, {self.slot(n) * 32768 + 16320}"
            H.append((m0, pre, d))
        return H

    def fill(self, n):
        L = []
        for m0, pre, d in self.fill_halves(n):
            L += [I(m0)] + pre + d
        return L

    def halves(self, n, upto, dyn=False):
        L = []
        while self.nh < min(upto, 64):
            h = self.nh
            m = F0 + (h >> 1)
            prev = m - 5 if m - 5 >= F0 else max(k for k in range(NW) if self.slot(k) == self.slot(m))
            assert prev < n, (n, h)
            m0, pre, d = self.fill_halves(m)[h & 1]
            if dyn:
                L += II(f"s_mov_b32 m0, s{sPrev}\ns_add_u32 s{sPrev}, s{sPrev}, 0x4000") + pre + d
                if h & 1:
                    L += II(f"s_cmp_ge_u32 s{sPrev}, 0x28000\ns_cselect_b32 s{sPrev}, s{sW4}, s{sPrev}")
            else:
                L += [I(m0)] + pre + d
            self.nh += 1
        return L

    def kfrag(self, hs, p, j, ks, czero=False):
        rd = [lambda b: f"ds_read_b128 {R('a', b, 4)}, v{aK + (ks & 3)} offset:{hs * 16384 + j * 1024 + (ks >> 2) * 256}"]
        mf = []
        for qb in range(3):
            d = R("v", S(p, j, qb), 4)
            c = d if ks else ("0" if czero else R("v", vNm + qb * 4, 4))
            mf.append(lambda b, d=d, c=c, qb=qb: f"{MF} {d}, {R('a', b, 4)}, {R('v', QB(ks, qb), 4)}, {c}")
        return dict(rd=rd, mf=mf, b=ks)

    def tfrag(self, hs, db, dst, bop, czero=False):
        rd = [lambda b, j=j: f"ds_read_b64_tr_b16 {R('a', b + 2 * j, 2)}, v{aV + (db & 7)} offset:{hs * 16384 + j * 1024 + (db >> 3) * 256}" for j in range(2)]
        mf = [lambda b, qb=qb: f"{MF} {dst(qb)}, {R('a', b, 4)}, {bop(qb)}, {'0' if czero else dst(qb)}" for qb in range(3)]
        return dict(rd=rd, mf=mf, b=bop(0))

    def wfrag(self, hs, db, dst, bop, czero=False):
        f = self.tfrag(hs, db, dst, bop, czero)
        f["rd"] = [lambda b, j=j: f"ds_read_b64_tr_b16 {R('a', b + 2 * j, 2)}, v{aW + (db & 1)} offset:{hs * 16384 + (db >> 1) * 2048 + j * 1024}" for j in range(2)]
        return f

    def ufrag(self, i, db, dst, bop, czero=False):
        f = self.tfrag(0, db, dst, bop, czero)
        f["rd"] = [lambda b, j=j: f"ds_read_b64_tr_b16 {R('a', b + 2 * j, 2)}, v{aU[db >> 1 & 3]} offset:{i * 32768 + (db >> 3) * 256 + j * 1024 + (db & 1) * 8}" for j in range(2)]
        return f

    def vfrag(self, hs, p, db):
        return self.tfrag(hs, db, lambda qb: R("a", O(db, qb), 4), lambda qb: R("v", P(p, qb), 4))

    def trace(self):
        if not self.a.trace:
            return []
        return II("""s_memrealtime s[98:99]
s_memtime s[100:101]
s_lshl_b64 exec, 1, s96
s_add_u32 s96, s96, 1
s_waitcnt lgkmcnt(0)
v_mov_b32 v252, s98
v_mov_b32 v253, s100
s_mov_b64 exec, -1""")

    def hop(self, n):
        if str(n) not in self.a.hops.split(","):
            return []
        k = self.nhop
        self.nhop += 1
        L = ["s_mov_b64 exec, 0"]
        for w in range(3):
            L += [f"s_cmp_eq_u32 s3, {w}", f"s_cbranch_scc1 L_hop{k}_{w}"]
        return [I(x) for x in L + [f"s_branch L_hop{k}_3", f"L_hopped{k}:", "s_mov_b64 exec, -1"]]

    def place_pads(self, code):
        k0 = next(i for i, x in enumerate(code) if x.text == "L_page0:")
        k1 = next(i for i, x in enumerate(code) if x.text == "L_last:")
        stubs = "".join(f"L_hop{k}_{w}:\n" for k in range(self.nhop) for w in range(4))
        sz = sizes(code, '.amdgcn_target "amdgcn-amd-amdhsa--gfx950"\n.text\n' + stubs)
        at, page, pads, src = 0, 1, [], {}
        i = k0
        while i < k1:
            x = code[i]
            if x.text.startswith("L_hopped"):
                src[int(x.text[8:-1])] = len(pads)
            if x.text.startswith(".p2align"):
                al = 1 << int(x.text.split()[1])
                at = -(-at // al) * al
            if at >= page * 4096:
                good = code[i - 1].kind == "mfma" and not x.scalar
                if good or at + sz[i] > page * 4096 + 48:
                    pads.append(i)
                    at += 4
                    page += 1
            at += sz[i]
            i += 1
        counts = [int(c) for c in self.a.hopn.split(",")]
        label, target, nxt = {}, {}, 0
        for k in range(self.nhop):
            nxt = max(nxt, src[k])
            mine = list(range(nxt, min(nxt + counts[k], len(pads))))
            nxt += len(mine)
            for w in range(4):
                ch = mine[w::4]
                if not ch:
                    label.setdefault(("h", k), []).append(f"L_hop{k}_{w}:")
                    continue
                label.setdefault(ch[0], []).append(f"L_hop{k}_{w}:")
                for p, q in zip(ch, ch[1:] + [None]):
                    target[p] = f"L_pad{q}" if q is not None else f"L_hopped{k}"
        out = []
        for i, x in enumerate(code):
            if x.text.startswith("L_hopped"):
                out += [I(l) for l in label.get(("h", int(x.text[8:-1])), [])]
            if i in pads:
                p = pads.index(i)
                out += [I(l) for l in label.get(p, [])] + [I(f"L_pad{p}:"), I(f"s_cbranch_execz {target[p]}" if p in target else "s_nop 0")]
            out.append(x)
        if self.a.v:
            print("pages", len(pads), "warmed", len(target), "sources", src)
        return out

    def put_mf(self, tl, f, needs=()):
        f["pos"] = tl.pos()
        order = [2, 1, 0] if self.a.serp and (f["buf"] >> 2) & 1 else [0, 1, 2]
        f["m"] = [tl.mfma(f["mf"][i](f["buf"]), needs=list(f["ri"]) + list(needs) + list(f.get("needs", [[], [], []])[i])) for i in order]
        self.buf_last[f["buf"]] = f["m"][-1]

    def put_pair(self, tl, f, g, needs=()):
        qs = [2, 1, 0] if (f["buf"] >> 3) & 1 else [0, 1, 2]
        f["pos"], g["pos"], f["m"], g["m"] = tl.pos(), tl.pos() + 1, [], []
        for i, x in zip((0, 0, 1, 1, 2, 2), (f, g, g, f, f, g)):
            q = qs[i]
            x["m"].append(tl.mfma(x["mf"][q](x["buf"]), needs=list(x["ri"]) + list(needs) + list(x.get("needs", [[], [], []])[q])))
        for x in (f, g):
            self.buf_last[x["buf"]] = x["m"][-1]

    def segment(self, tl, n, frags, hooks=None, dyn=False, upd="KV", last=False, fills=(), upto=0, extra=(), dwin=None, also=None, first=(), upto_fill=None):
        hooks = hooks or {}
        X, Y = self.X, self.Y
        p0 = tl.pos()
        st = [] if ((dyn and self.a.trace == 2) or (self.a.trace == 3 and n != WO0)
                    or (self.a.trace == 4 and n not in (F0, WO0)) or (self.a.trace == 6 and n < FL - 1)
                    or (self.a.trace == 5 and (dyn or n % 2 or n > F0 + 2) and n not in (F0 + 1, FL, WO0))) else self.trace()

        nhi = NEND if n == WO0 + self.a.lastbar else upto_fill or n

        def barrier(cnt):
            if n > WO0 + self.a.lastbar:
                return st and [I("s_waitcnt lgkmcnt(0)")] + st
            v = 4 * (self.a.lead - 2) if dyn else cnt.need(cnt.vm, lambda x: x.tag and (x.tag[0] == "fill" and n <= x.tag[1] <= nhi or (also and also(x))))
            w = "s_waitcnt " + (f"vmcnt({v}) " if v is not None else "") + "lgkmcnt(0)"
            return self.hop(n) + [I(w), I("s_barrier", tag=("bar", n, self.ndma(n), nhi))] + st
        bar = tl.add("rd", Lazy(barrier), p0, deps=[self.lastdma] if self.lastdma else [])
        tail, self.tail = self.tail, []
        base = p0 + 3 * (len(tail) - X)
        nf = len(frags)
        for i, f in enumerate(frags):
            f["buf"] = FRAG0 + 4 * (self.fc % 16)
            self.fc += 1
            f["ri"] = [I(x) for x in f.get("pre", [])] + [I(r(f["buf"])) for r in f["rd"]]
        for f in tail:
            self.put_mf(tl, f)
        seg = dict(p0=p0, p1=tl.pos(), bar=bar, tail=tail, end=p0 + 3 * (len(tail) + nf - (0 if last else X)))
        if n >= WO0 + self.a.lastbar:
            Y = 1
        span = 3.0 * (nf - Y) / nf
        for i, f in enumerate(frags):
            for k, r in enumerate(f["ri"]):
                tl.add("rd", r, base + span * (i + k / len(f["ri"])))
        for f in frags:
            if f.get("late"):
                for r in f["ri"][:3]:
                    tl.streams["rd"].remove(r)
                    tl.add("rx", r, seg["p1"], deps=[bar, tail[-1]["m"][-1]])
        nhead = nf if last else nf - X
        for i, f in enumerate(frags):
            d = self.buf_last.get(f["buf"])
            if d is not None and "m" not in f:
                f["ri"][0].deps.append(d)
            if "m" in f:
                continue
            if i < nhead:
                needs = hooks[i](tl, seg) if i in hooks else []
                g = frags[i + 1] if i + 1 < nhead and i + 1 not in hooks else {}
                if self.a.gray and f.get("b") is not None and f["b"] == g.get("b"):
                    if self.buf_last.get(g["buf"]) is not None:
                        g["ri"][0].deps.append(self.buf_last[g["buf"]])
                    self.put_pair(tl, f, g, needs)
                else:
                    self.put_mf(tl, f, needs)
            else:
                self.tail.append(f)
        if not last:
            regs = ([aX] if "X" in upd else []) + ([aK + i for i in range(4)] if "K" in upd else []) + ([aV + i for i in range(8)] if "V" in upd else []) + ([aW, aW + 1] if "W" in upd else []) + (list(aU) if "U" in upd else [])
            dl = (self.slot((upto_fill or n) + 1) - self.slot(n)) * 32768
            src = f"s{sDelta}" if dyn else hex(dl & 0xffffffff)
            ups = [I(f"v_add_u32 v{r}, {src}, v{r}") for r in regs]
        if first:
            tl.spread("dma", first, p0 + 1, p0 + 1 + 1.5 * len(first), deps=[bar])
            self.lastdma = first[-1]
        fl = []
        for m in fills:
            fl += self.fill(m)
        fl += self.halves(n, upto, dyn) + list(extra)
        if dyn:
            sel = II(f"""s_cmp_ge_u32 s{sCur}, 0x20000
s_cselect_b32 s{sDelta}, s{sNeg}, s{sPos}
s_add_u32 s{sCur}, s{sCur}, s{sDelta}""")
            fl = sel + fl
            ups[0].deps = [sel[1]]
        if fl:
            lo, hi = dwin or (self.a.dmalo, self.a.dmaspan)
            tl.spread("dma", fl, p0 + 1 + (seg["end"] - p0) * lo, p0 + 1 + (seg["end"] - p0) * hi, deps=[bar])
            self.lastdma = fl[-1]
        if not last:
            tl.spread("rd", ups, seg["end"] - 3 * Y, seg["end"] - 1)
        return seg

    def softmax(self, p):
        blocks = [(j, qb) for j in range(2) for qb in range(3)]
        L, post = [], []
        for bi, (j, qb) in enumerate(blocks):
            e = vE + 4 * (bi & 1)
            for r in range(4):
                L.append(f"v_exp_f32 v{e + r}, v{S(p, j, qb) + r}")
                L += post[2 * r:2 * r + 2]
            t = vT + qb
            post = [f"v_cvt_pk_bf16_f32 v{P(p, qb) + 2 * j}, v{e}, v{e + 1}"]
            post += [f"v_add_f32 v{t}, v{e}, v{e + 1}"] if j == 0 else [f"v_add_f32 v{t}, v{t}, v{e}", f"v_add_f32 v{t}, v{t}, v{e + 1}"]
            post += [f"v_add_f32 v{t}, v{t}, v{e + 2}", f"v_cvt_pk_bf16_f32 v{P(p, qb) + 2 * j + 1}, v{e + 2}, v{e + 3}", f"v_add_f32 v{t}, v{t}, v{e + 3}"]
        L += post
        L += [f"v_max3_f32 v{vTmp}, v{vT}, v{vT + 1}, v{vT + 2}", f"v_cmp_nge_f32 vcc, {f32(self.a.thr)}, v{vTmp}"]
        return [I(x) for x in L]

    def check(self, tl, p, after, target):
        k = len(self.slow_sites)
        self.slow_sites.append(p)
        br = tl.add("sm", Lazy(lambda cnt: [I(f"s_cbranch_vccnz L_slow{k}"), I(f"L_back{k}:")]), target, deps=after)
        return br, [I(f"v_add_f32 v{vL + qb}, v{vL + qb}, v{vT + qb}") for qb in range(3)]

    def xlane(self, regs, op):
        L = []
        for sw in ("v_permlane16_swap_b32", "v_permlane32_swap_b32"):
            L += [f"v_mov_b32 v{vTmp + 4 + i}, v{r}" for i, r in enumerate(regs)]
            L += [f"{sw} v{r}, v{vTmp + 4 + i}" for i, r in enumerate(regs)]
            L += [f"{op} v{r}, v{r}, v{vTmp + 4 + i}" for i, r in enumerate(regs)]
        return L

    def tilemax(self, p):
        L, mx = [], [vTmp + 1 + qb for qb in range(3)]
        for step in range(4):
            for qb in range(3):
                s0, s1 = S(p, 0, qb), S(p, 1, qb)
                v = [s0, s0 + 1, s0 + 2, s0 + 3, s1, s1 + 1, s1 + 2, s1 + 3]
                if step == 0:
                    L.append(f"v_max_f32 v{mx[qb]}, v{v[0]}, v{v[1]}")
                else:
                    L.append(f"v_max3_f32 v{mx[qb]}, v{mx[qb]}, v{v[2 * step]}, v{v[2 * step + 1]}")
        return L + self.xlane(mx, "v_max_f32"), mx

    def slow_routine(self, p):
        L = [f"L_rescale{p}:", "s_nop 15"]
        redo = self.softmax(0)[:-2] if p == 2 else []
        p = min(p, 1)
        m, mx = self.tilemax(p)
        L += m
        L += [f"v_max_f32 v{r}, 0, v{r}" for r in mx]
        for qb in range(3):
            L += [f"v_sub_f32 v{vNm + qb * 4 + r}, v{vNm + qb * 4 + r}, v{mx[qb]}" for r in range(4)]
            for pp in range(2):
                for j in range(2):
                    L += [f"v_sub_f32 v{S(pp, j, qb) + r}, v{S(pp, j, qb) + r}, v{mx[qb]}" for r in range(4)]
        L += [f"v_exp_f32_e64 v{r}, -v{r}" for r in mx]
        L += [f"v_mul_f32 v{vL + qb}, v{vL + qb}, v{mx[qb]}" for qb in range(3)]
        for db in range(16):
            for qb in range(3):
                L += [f"v_accvgpr_read_b32 v{vE + r}, a{O(db, qb) + r}" for r in range(4)]
                L += [f"v_mul_f32 v{vE + r}, v{vE + r}, v{mx[qb]}" for r in range(4)]
                L += [f"v_accvgpr_write_b32 a{O(db, qb) + r}, v{vE + r}" for r in range(4)]
        L = [I(x) for x in L] + redo + self.softmax(p)[:-2]
        return L + [I("s_nop 3"), I(f"s_setpc_b64 s[{sRet}:{sRet + 1}]")]

    def korder(self):
        if self.a.kmaj:
            return [(j, ks) for ks in range(8) for j in range(2)]
        return [(j, ks) for j in range(2) for ks in range(8)]

    def steady(self, tl, u, dyn, lo=None, ticket=()):
        X = self.X
        ks_ = [self.kfrag(0, (u + 1) & 1, j, ks) for j, ks in self.korder()]
        vs_ = [self.vfrag(1, (u - 1) & 1, db) for db in range(16)]
        nk = 16 - X
        g = self.a.grp
        keyed = [((i // g * g + 0.5) / nk, f) for i, f in enumerate(ks_[:nk])] + [((i // g * g + 0.25) / 16, f) for i, f in enumerate(vs_)]
        frags = [f for _, f in sorted(keyed, key=lambda t: t[0])] + ks_[nk:]
        extra = []
        if u == 29:
            extra += II(f"""buffer_load_dword v168, off, {srd(SRD_DBG)}, 0 sc1
v_mbcnt_lo_u32_b32 v170, -1, 0
v_mbcnt_hi_u32_b32 v170, -1, v170
v_lshlrev_b32 v{vLn}, 12, v170
v_lshlrev_b32 v{vTd}, 12, v{oSt}
v_min_u32 v172, 55, v170
v_lshlrev_b32 v172, 7, v172
v_min_u32 v{vCp}, {35 * 128}, v172""") + self.tail_tokens(FL - 2, self.a.wo29)
        if u == 30:
            extra = [Lazy(self.dbg_check)] + II(f"""v_and_b32 v171, 3, v170
v_lshlrev_b32 v171, {self.a.fsh}, v171
buffer_load_dword v169, v171, {srd(SRD_FLG)}, s{sIds} offen sc1""") + self.tail_tokens(F0 + u)
        first = []
        if dyn and self.a.ltouch >> (u & 1) & 1:
            sr, so = ((SRD_WO, sTo), (SRD_GRP, sTo + 1))[u & 1]
            first = II(f"buffer_load_dword v{229 + (u & 1)}, v{vCp}, {srd(sr)}, s{so} offen\ns_add_u32 s{so}, s{so}, {(5, 6)[u & 1] * 128}")
        upto = 2 * u + 2 + self.a.lead
        if u < len(self.sched):
            upto = self.nh + self.sched[u]
        dwin = None if lo is None else (lo, self.a.dmaspan)
        first = list(ticket) + first
        if u > 30 - self.a.sprint:
            upto, dwin = 2 * u + 2 + self.a.slead, (self.a.slo, self.a.dmaspan)
        return self.segment(tl, F0 + u, frags, hooks={0: self.sm_hook(u)}, dyn=dyn, upto=upto, extra=extra, first=first, dwin=dwin)

    def tail_win(self, n):
        t = self.wos[n - FL + 1] if n - FL + 1 < len(self.wos) else ""
        return 0.1 * t.count("."), 0.92 - 0.1 * t.count(",")

    def tail_tokens(self, n, toks=None):
        L = []
        if toks is None:
            toks = self.wos[n - FL + 1] if n - FL + 1 < len(self.wos) else ""
        for c in toks:
            if c == "P":
                L += self.wo_items(n, 1)
            elif c == "O":
                L += II(f"buffer_load_dword v{aX}, v172, {srd(SRD_WO)}, s{sTo} offen")
            elif c == "R":
                L += II(f"buffer_load_dword v{192 + self.nr}, v{vCp}, {srd(SRD_GRP)}, s{sTo + 1} offen\ns_add_u32 s{sTo + 1}, s{sTo + 1}, {36 * 128}")
                self.nr += 1
        return L

    def vwait(self, cnt, pred):
        v = cnt.need(cnt.vm, pred)
        return [] if v is None else [I(f"s_waitcnt vmcnt({min(v, 63)})")]

    def spin(self, nm, load, reg, test, back):
        self.ool += II(f"""{nm}:
s_sleep {self.a.pollsleep}
{load}
s_waitcnt vmcnt(0)
v_readfirstlane_b32 s{sPv}, v{reg}
s_nop 1
{test}
s_cbranch_scc0 {back}
s_sub_u32 s{sSpin}, s{sSpin}, 1
s_cbranch_scc0 {nm}
s_endpgm""")

    def dbg_check(self, cnt):
        self.spin("L_dbg", f"buffer_load_dword v168, off, {srd(SRD_DBG)}, 0 sc1", 168, f"s_and_b32 s{sPv}, s{sPv}, 15", "L_dbgok")
        return self.vwait(cnt, lambda x: "v168" in x.wr) + II(f"""v_readfirstlane_b32 s{sPv}, v168
s_nop 1
s_and_b32 s{sPv}, s{sPv}, 15
s_cbranch_scc1 L_dbg
L_dbgok:""")

    def die_check(self, cnt):
        return self.vwait(cnt, lambda x: "v169" in x.wr) + II(f"""v_cmp_ne_u32 s[{sFb}:{sFb + 1}], s{sXcc}, v169
s_nop 1
s_cmp_lg_u64 s[{sFb}:{sFb + 1}], {-1 if self.a.forcefb else 0}
s_cselect_b32 s{sPv}, {QSTR}, 0
s_cselect_b64 s[{sFb}:{sFb + 1}], -1, 0""")

    def sm_hook(self, u, end=None, whole=False):
        def hook(tl, seg):
            tl.spread("sm", self.softmax((u - 1) & 1)[-self.a.cut:], seg["p0"], seg["p1"] - 3)
            br, ladd = self.check(tl, (u - 1) & 1, [seg["tail"][-1]["m"][-1]], seg["p1"])
            sm = self.softmax(u & 1)
            if not whole:
                sm = sm[:-self.a.cut]
            tl.spread("sm", ladd + sm, seg["p1"], end(seg) if end else seg["end"] - 4)
            return [br]
        return hook

    def init(self):
        a = self.a
        L = II(f"""s_cmp_ge_u32 s2, 256
s_cbranch_scc1 L_end
s_load_dwordx16 s[44:59], s[0:1], 0
s_load_dwordx4 s[60:63], s[0:1], 64
s_load_dwordx4 s[88:91], s[0:1], 80
s_load_dwordx2 s[64:65], s[0:1], 96
v_lshrrev_b32 v1, 6, v0
v_and_b32 v2, 63, v0
v_readfirstlane_b32 s3, v1
s_and_b32 s4, s2, 7
s_lshr_b32 s92, s2, 3
s_lshr_b32 s6, s4, 2
s_and_b32 s4, s4, 3
s_lshl_b32 s4, s4, 2
{'s_and_b32 s93, s92, 3' if a.map else 's_lshr_b32 s93, s92, 3'}
s_add_u32 s4, s4, s93
{'s_lshr_b32 s7, s92, 2' if a.map else 's_and_b32 s7, s92, 7'}
s_lshl_b32 s{sW4}, s3, 12
v_lshrrev_b32 v3, 5, v2
v_and_b32 v4, 31, v2
v_and_b32 v5, 1, v1
v_lshlrev_b32 v5, 3, v5
v_lshl_or_b32 v5, v3, 1, v5
v_xor_b32 v6, v4, v5
v_xor_b32 v7, 4, v6
v_lshl_add_u32 v8, v1, 3, v3
v_lshlrev_b32 v9, 13, v8
v_lshlrev_b32 v12, 2, v3
v_xor_b32 v12, v12, v4
v_xor_b32 v13, 8, v12
v_lshl_add_u32 v{oWq}, v12, 4, v9
v_lshl_add_u32 v{oWq + 1}, v13, 4, v9
s_mul_i32 s{sW8}, s3, 4104
v_add_u32 v{oWq + 1}, {2 * 8192 - 2048}, v{oWq + 1}
v_and_b32 v10, 15, v2
v_lshrrev_b32 v11, 4, v2
v_lshrrev_b32 v19, 2, v2
v_and_b32 v20, 3, v2
v_mul_u32_u24 v12, 48, v1
v_add_u32 v12, v12, v19
v_mul_u32_u24 v12, 896, v12
v_sub_u32 v13, 0, v11
v_xor_b32 v13, v13, v20
v_and_b32 v13, 3, v13
v_lshl_add_u32 v{vX}, v13, 4, v12
v_add_u32 v{vX + 1}, {16 * 896 - 1024}, v{vX}
v_add_u32 v{vX + 2}, {32 * 896 - 2048}, v{vX}
s_waitcnt lgkmcnt(0)
s_cmp_eq_u32 s6, 0
s_cselect_b64 s[{SRD_X}:{SRD_X + 1}], s[44:45], s[54:55]
s_cselect_b64 s[{SRD_K}:{SRD_K + 1}], s[46:47], s[56:57]
s_cselect_b64 s[{SRD_V}:{SRD_V + 1}], s[48:49], s[58:59]
s_cselect_b64 s[{SRD_WQ}:{SRD_WQ + 1}], s[50:51], s[60:61]
s_cselect_b64 s[{SRD_WO}:{SRD_WO + 1}], s[52:53], s[62:63]
s_mul_i32 s94, s7, 172032
s_add_u32 s{SRD_X}, s{SRD_X}, s94
s_addc_u32 s{SRD_X + 1}, s{SRD_X + 1}, 0
s_mov_b32 s{SRD_X + 2}, 172032
s_mov_b32 s{SRD_X + 3}, 0x20000
s_lshl_b32 s94, s4, 9
s_add_u32 s{SRD_WQ}, s{SRD_WQ}, s94
s_addc_u32 s{SRD_WQ + 1}, s{SRD_WQ + 1}, 0
s_mov_b32 s{SRD_WQ + 2}, {447 * 8192 + 512}
s_mov_b32 s{SRD_WQ + 3}, 0x20000""")
        if a.trace:
            L[2:2] = II("s_mov_b32 s96, 0\nv_mov_b32 v252, 0\nv_mov_b32 v253, 0") + self.trace()
        tcalc = II(f"""s_lshl_b32 s94, s7, 2
s_add_u32 s94, s94, s3
s_lshl_b32 s94, s94, 13
v_lshl_add_u32 v13, v19, 18, s94
v_lshl_add_u32 v13, v20, 7, v13
v_cmp_gt_u32 vcc, {4 * a.tb}, v2
v_mov_b32 v16, 0x40000000
s_and_b32 s94, s4, 3
s_lshl_b32 s94, s94, 2
v_cndmask_b32 v{vTw}, v16, v13, vcc
s_add_u32 s94, s94, s3
s_mul_i32 s94, s94, {12 * 896}
v_mul_u32_u24 v13, 43, v2
v_lshrrev_b32 v13, 9, v13
v_mul_u32_u24 v14, 12, v13
v_sub_u32 v14, v2, v14
v_mul_u32_u24 v14, 896, v14
v_lshl_add_u32 v13, v13, 7, v14
v_cmp_gt_u32 vcc, {6 * a.tb}, v2
v_add_u32 v13, s94, v13
s_nop 0
v_cndmask_b32 v{vTw + 1}, v16, v13, vcc""")
        kv = II(f"""s_lshl_b32 s94, s7, 4
s_add_u32 s94, s94, s4
s_lshl_b32 s95, s94, 19
s_add_u32 s{SRD_K}, s{SRD_K}, s95
s_addc_u32 s{SRD_K + 1}, s{SRD_K + 1}, 0
s_mov_b32 s{SRD_K + 2}, 0x80000
s_mov_b32 s{SRD_K + 3}, 0x20000
s_add_u32 s{SRD_V}, s{SRD_V}, s95
s_addc_u32 s{SRD_V + 1}, s{SRD_V + 1}, 0
s_mov_b32 s{SRD_V + 2}, 0x80000
s_mov_b32 s{SRD_V + 3}, 0x20000
s_mul_i32 s94, s2, {a.rmul}
s_lshr_b32 s94, s94, {a.rsh}
s_and_b32 s94, s94, 31
s_lshr_b32 s95, s94, {a.ws}
s_lshl_b32 s95, s95, {a.ws + 14}
s_and_b32 s{sK}, s94, {(1 << a.ws) - 1}
s_lshl_b32 s{sK}, s{sK}, 12
s_or_b32 s{sK}, s{sK}, s95
s_mov_b32 s{sV}, s{sK}
v_lshlrev_b32 v9, {12 + a.ws}, v1
v_lshl_add_u32 v9, v3, 9, v9
v_lshl_add_u32 v{oV}, v6, 4, v9
v_lshl_add_u32 v{oV + 1}, v7, 4, v9
v_lshl_or_b32 v12, v1, 2, v3
v_xor_b32 v12, v4, v12
v_xor_b32 v13, 2, v12
v_lshl_add_u32 v{oK}, v12, 4, v9
v_lshl_add_u32 v{oK + 1}, v13, 4, v9
v_mul_u32_u24 v13, 3072, v1
v_lshl_add_u32 v{oSt}, v2, 4, v13""")
        rest = f"""s_lshl_b32 s95, s6, 3
s_add_u32 s95, s95, s7
s_mul_i32 s93, s95, {GSTR}
s_add_u32 s{SRD_GRP}, s64, s93
s_addc_u32 s{SRD_GRP + 1}, s65, 0
s_mov_b32 s{SRD_GRP + 2}, {GSTR}
s_mov_b32 s{SRD_GRP + 3}, 0x20000
s_mul_i32 s93, s95, {a.flagstride}
s_add_u32 s93, s93, {FLAGOFF}
s_add_u32 s{SRD_FLG}, s64, s93
s_addc_u32 s{SRD_FLG + 1}, s65, 0
s_mov_b32 s{SRD_FLG + 2}, 4096
s_mov_b32 s{SRD_FLG + 3}, 0x20000
s_getreg_b32 s{sXcc}, hwreg(HW_REG_XCC_ID, 0, 4)
s_lshl_b32 s{sMyF}, s4, {a.fsh}
s_lshr_b32 s93, s4, 2
s_lshl_b32 s{sIds}, s93, {a.fsh + 2}
s_add_u32 s{sIds}, s{sIds}, 4
s_mul_i32 s{sSt + 3}, s93, {QSTR}
s_mul_i32 s{sSt}, s93, {4 * QSTR}
s_lshl_b32 s93, s93, 7
s_lshl_b32 s94, s3, 2
s_add_u32 s93, s93, s94
s_add_u32 s93, s93, 2048
s_and_b32 s94, s4, 3
s_lshl_b32 s94, s94, 4
s_add_u32 s{sMyR}, s93, s94
s_xor_b32 s{sPrR}, s{sMyR}, 16
s_xor_b32 s{sPrR + 1}, s{sMyR}, 32
v_mov_b32 v{vL}, 0
v_mov_b32 v21, s{sXcc}
v_lshlrev_b32 v22, 12, v2
v_lshlrev_b32 v23, 12, v0
buffer_store_dword v{vL}, v23, {srd(SRD_FLG)}, s{sMyF} offen sc1
buffer_store_dword v21, v23, {srd(SRD_FLG)}, s{sMyF} offen offset:4 sc1
buffer_store_dword v{vL}, v22, {srd(SRD_FLG)}, s{sMyR} offen sc1
s_add_u32 s{sSt + 3}, s{sSt + 3}, {FBASE}
s_add_u32 s{sSt}, s{sSt}, {RBASE}
s_and_b32 s{sPc}, s4, 3
s_xor_b32 s{sPc + 1}, s{sPc}, 1
s_xor_b32 s{sPc + 2}, s{sPc}, 3
s_xor_b32 s{sPc + 3}, s{sPc}, 2
s_mul_i32 s{sD}, s4, {DSTR}
s_mov_b32 s{sSpin}, 0x40000
s_lshl_b32 s93, s95, 4
s_add_u32 s{SRD_DBG}, s90, s93
s_addc_u32 s{SRD_DBG + 1}, s91, 0
s_lshl_b32 s93, s92, 3
s_add_u32 s{sTk}, s90, s93
s_addc_u32 s{sTk + 1}, s91, 0
s_mov_b32 s{sRk}, 0x7fffffff
s_mov_b32 s{sRk + 1}, {a.bthr - 8}
s_mov_b32 s{SRD_DBG + 2}, 4
s_mov_b32 s{SRD_DBG + 3}, 0x20000
s_mul_i32 s93, s7, {192 * 1792}
s_mul_i32 s94, s6, 896
s_add_u32 s93, s93, s94
s_add_u32 s{SRD_OUT}, s88, s93
s_addc_u32 s{SRD_OUT + 1}, s89, 0
s_mov_b32 s{SRD_OUT + 2}, {191 * 1792 + 896}
s_mov_b32 s{SRD_OUT + 3}, 0x20000
s_lshl_b32 s{sGw}, s3, 4
s_add_u32 s{sGw}, s{sGw}, s4
s_lshr_b32 s93, s4, 2
s_sub_u32 s93, s{sGw}, s93
s_cmp_eq_u32 s3, 3
s_cselect_b32 s{sGw}, s93, s{sGw}
s_and_b32 s93, s4, s3
s_add_u32 s94, s7, 60
s_cmp_eq_u32 s93, 3
s_cselect_b32 s{sGw}, s94, s{sGw}
s_sub_u32 s94, s{sGw}, 24
s_mul_i32 s93, s94, 5462
s_lshr_b32 s93, s93, 16
s_mul_i32 s93, s93, 36
s_add_u32 s94, s94, s93
s_add_u32 s93, s{sGw}, 144
s_cmp_lt_u32 s{sGw}, 24
s_cselect_b32 s93, s93, s94
s_cselect_b32 s94, s{sGw}, s94
s_cselect_b32 s95, 0, {FBASE}
s_mov_b32 s{sRq + 1}, {HC}
s_cselect_b32 s{sRq + 1}, {4 * DSTR}, s{sRq + 1}
s_mov_b32 s{sRb + 1}, {QSTR}
s_cselect_b32 s{sRb + 1}, {DSTR}, s{sRb + 1}
s_lshl_b32 s94, s94, 10
s_add_u32 s{sRb}, s94, s95
s_mov_b32 s{sRq}, 0
s_lshl_b32 s{sRq + 2}, s{sRq + 1}, 1
s_add_u32 s{sRq + 3}, s{sRq + 2}, s{sRq + 1}
s_mul_i32 s94, s93, 5462
s_lshr_b32 s94, s94, 16
s_mul_i32 s95, s94, 12
s_sub_u32 s95, s93, s95
s_mul_i32 s95, s95, {16 * 1792}
s_lshl_b32 s94, s94, 6
s_add_u32 s{sOo}, s94, s95
s_mul_i32 s95, s4, 229376
s_add_u32 s{SRD_WO}, s{SRD_WO}, s95
s_addc_u32 s{SRD_WO + 1}, s{SRD_WO + 1}, 0
s_sub_u32 s{SRD_WO}, s{SRD_WO}, 4096
s_subb_u32 s{SRD_WO + 1}, s{SRD_WO + 1}, 0
s_mov_b32 s{SRD_WO + 2}, {229376 + 4096}
s_mov_b32 s{SRD_WO + 3}, 0x20000
s_mov_b32 s{sPos}, 0x8000
s_mov_b32 s{sNeg}, 0xfffe0000
s_mov_b32 s{sC}, {f32(1.4426950408889634 / 16)}
v_lshl_add_u32 v13, v1, 6, v19
v_mul_u32_u24 v13, 896, v13
v_and_b32 v14, 1, v11
v_lshlrev_b32 v14, 1, v14
v_xor_b32 v15, v14, v20
v_lshl_add_u32 v13, v15, 4, v13
v_add_u32 v{oWo}, 4096, v13
v_add_u32 v{oWo + 1}, {4096 + 32 * 896 - 2048}, v13
v_lshrrev_b32 v15, 1, v20
v_or_b32 v15, v15, v14
v_lshlrev_b32 v15, 4, v15
v_lshl_add_u32 v15, v19, 6, v15
v_and_b32 v14, 1, v2
v_lshl_add_u32 v255, v14, 3, v15
v_lshrrev_b32 v13, 1, v10
v_and_b32 v14, 1, v10
v_lshl_add_u32 v13, v13, 2, v14
v_lshlrev_b32 v13, 9, v13
v_and_b32 v14, 1, v11
v_xor_b32 v15, v11, v10
v_lshl_add_u32 v13, v15, 4, v13
v_add_u32 v{aK}, {self.slot(F0) * 32768}, v13
v_xor_b32 v{aK + 1}, 64, v{aK}
v_xor_b32 v{aK + 2}, 128, v{aK}
v_xor_b32 v{aK + 3}, 192, v{aK}
v_bfe_u32 v13, v2, 3, 1
v_bfe_u32 v15, v2, 2, 1
v_lshlrev_b32 v16, 3, v11
v_lshl_add_u32 v16, v13, 2, v16
v_add_u32 v16, v16, v15
v_lshlrev_b32 v16, 9, v16
v_lshlrev_b32 v17, 3, v14
v_lshl_or_b32 v17, v13, 2, v17
v_lshl_or_b32 v17, v15, 1, v17
v_bfe_u32 v18, v2, 1, 1
v_or_b32 v17, v17, v18
v_lshl_add_u32 v16, v17, 4, v16
v_and_b32 v18, 1, v2
v_lshl_add_u32 v16, v18, 3, v16
v_add_u32 v{aV}, {self.slot(F0) * 32768}, v16
v_mul_u32_u24 v16, 4104, v11
v_lshl_add_u32 v16, v13, 11, v16
v_lshl_add_u32 v16, v15, 9, v16
v_add_u32 v16, {self.slot(0) * 32768 + 16320}, v16
v_lshl_add_u32 v{aU[0]}, v10, 4, v16
v_xor_b32 v17, 4, v10
v_lshl_add_u32 v{aU[1]}, v17, 4, v16
v_xor_b32 v17, 8, v10
v_lshl_add_u32 v{aU[2]}, v17, 4, v16
v_xor_b32 v17, 12, v10
v_lshl_add_u32 v{aU[3]}, v17, 4, v16
v_lshrrev_b32 v13, 2, v10
v_sub_u32 v13, 0, v13
v_xor_b32 v13, v13, v11
v_and_b32 v13, 3, v13
v_lshlrev_b32 v13, 4, v13
v_lshl_add_u32 v13, v10, 6, v13
v_lshl_add_u32 v13, v1, 12, v13
v_add_u32 v{aX}, {self.slot(0) * 32768}, v13
v_mov_b32 v{vT}, 1"""
        rest = rest.split("\n")
        code = II(f"""s_getpc_b64 s[94:95]
L_pc:
s_lshl_b32 s93, s92, 2
s_add_u32 s93, s93, s3
s_lshl_b32 s93, s93, 9
v_lshl_add_u32 v13, v20, 7, s93
v_min_u32 v13, L_last-L_page0, v13
v_add_u32 v13, L_page0-L_pc, v13
v_mov_b32 v15, s95
v_add_co_u32 v14, vcc, s94, v13
s_nop 1
v_addc_co_u32 v15, vcc, 0, v15, vcc
global_load_dword v231, v[14:15], off""") if a.ctouch else []
        rest += [f"v_xor_b32 v{aV + i}, {32 * i}, v{aV}" for i in range(1, 8)]
        rest += [f"v_mov_b32 v{vL + qb}, 0" for qb in range(1, 3)]
        rest += f"""s_lshl_b32 s93, s7, 2
s_add_u32 s93, s93, s3
s_mul_i32 s93, s93, {56 * 128}
s_add_u32 s{sTo}, s93, 4096
s_lshl_b32 s93, s{sPc}, 2
s_add_u32 s93, s93, s3
s_mul_i32 s93, s93, {72 * 128}
s_add_u32 s{sTo + 1}, s93, s{sSt}
v_min_u32 v13, 5, v2
v_lshlrev_b32 v{vCp}, 7, v13""".split("\n")
        T = self.trace if a.itrace else (lambda: [])
        late = kv + [I(x) for x in rest]
        if a.pre:
            soon = lambda x: x.kind == "valu" or x.mn == "s_getreg_b32"
            k = max(i for i, x in enumerate(L) if x.text == "s_waitcnt lgkmcnt(0)")
            L[k:k] = code + tcalc + [x for x in late if soon(x)]
            code, tcalc, late = [], [], [x for x in late if not soon(x)]
        L += T() + self.tokens(-1, self.qs[0]) + code + tcalc + self.tokens(-1, self.qs[1]) + T() + late + self.tokens(-1, self.qs[2]) + T()
        L += II("s_branch L_page0\n.p2align 12\nL_page0:")
        for x in L:
            self.cnt.see(x)
        return L

    def tokens(self, n, toks):
        L = []
        for t in toks:
            if t == "W":
                L += self.tokens(n, "Q" if self.nw & 1 else "XQ")
            elif t == "X":
                k = self.nx
                assert k + 1 <= max(n, 0) + 4
                L += II(f"s_mov_b32 s{sT2}, {k * 64}\ns_mov_b32 s{sX2}, {k * 64 + 64}")
                for qb in range(3):
                    for m, so in ((k, sT2), (k + 1, sX2)):
                        L += [I(self.fill_halves(m)[0][0]), self.dma(m, vX + qb, SRD_X, so, qb * 1024, self.a.wfl)]
                self.nx += 2
            elif t == "Q":
                assert self.nw <= max(n, 0) + 4
                m0, pre, d = self.fill_halves(self.nw)[1]
                L += [I(m0)] + pre + d
                self.nw += 1
            elif t == "T":
                k0 = self.a.t0 + self.nt * self.a.tb
                L += II(f"""s_mov_b32 s{sT0}, {k0 * 262144}
s_mov_b32 s{sT1}, {k0 // 2 * 128}
buffer_load_dword v231, v{vTw}, {srd(SRD_WQ)}, s{sT0} offen
buffer_load_dword v231, v{vTw + 1}, {srd(SRD_X)}, s{sT1} offen""")
                self.nt += 1
            elif t == "K":
                L += II(f"buffer_load_dword v231, off, {srd(SRD_K)}, s{sK} nt\nbuffer_load_dword v231, off, {srd(SRD_V)}, s{sV} nt")
            elif t == "H":
                L += self.halves(n, self.nh + 1)
        return L

    def qproj(self, tl):
        a = self.a
        nj = NW - 1 - a.joint
        for n in range(nj + 1):
            ks_ = [n] if n < nj else list(range(n, NW))
            frags = [self.ufrag(k - n, db, lambda qb, db=db: R("v", QA(db, qb), 4), lambda qb, k=k: R("v", XB(k, qb), 4), czero=(k == 0))
                     for db in range(16) for k in ks_]
            for i, k in enumerate(ks_):
                assert self.slot(k) == self.slot(n) + i
                frags[i]["pre"] = [f"ds_read_b128 {R('v', XB(k, qb), 4)}, v{aX} offset:{i * 32768 + qb * 1024}" for qb in range(3)]
                frags[i]["late"] = i > 0
            self.qlast = frags[len(ks_) - 1::len(ks_)]
            frags = [f for _, f in sorted(enumerate(frags), key=lambda t: t[0] + 5.5 * (t[0] % len(ks_)))]
            toks = "".join(self.qs[3 + k] for k in ks_)
            extra = self.tokens(n, toks)
            if n == 11:
                extra += II(f"buffer_atomic_add v{vT}, v{oSt}, {srd(SRD_DBG)}, 0 offen sc1")
            dwin = (0.1 * toks.count("."), 0.92 - 0.1 * toks.count(","))
            seg = self.segment(tl, n, frags, upd="XU" if n < nj else "", extra=extra, dwin=dwin, upto_fill=ks_[-1])
            if 1 <= n <= 8:
                tl.spread("z", [f"v_accvgpr_write_b32 a{i}, 0" for i in range(24 * (n - 1), 24 * n)], seg["p0"], seg["end"] - 9)

    def qconv(self, tl):
        last = {}
        for ks in range(8):
            L = []
            for qb in range(3):
                s, d = QA(2 * ks, qb), QB(ks, qb)
                L += [f"v_mul_f32 v{s + i}, s{sC}, v{s + i}" for i in range(8)]
                L += [f"v_cvt_pk_bf16_f32 v{d + i}, v{s + 2 * i}, v{s + 2 * i + 1}" for i in range(4)]
            f = self.qlast[2 * ks + 1]
            for x in L:
                last[ks] = tl.add("cv", x, f["pos"] + 6, deps=[f["m"][-1]])
        return last

    def first(self, tl):
        fr = [self.kfrag(0, 0, j, ks, czero=True) for ks in range(8) for j in range(2)]
        early = self.a.early
        fr += [self.kfrag(1, 1, j, ks, czero=(j == 0 and early)) for j in range(2) for ks in range(8)]
        st = {}

        def h0(tl, seg):
            cv = self.qconv(tl)
            for i in range(16):
                fr[i]["needs"] = [[cv[max(i >> 1, 1)]]] * 3
            return []

        def h16(tl, seg):
            m, st["mx"] = self.tilemax(0)
            m += [f"v_sub_f32 v{vNm + qb * 4 + r}, 0, v{st['mx'][qb]}" for qb in range(3) for r in range(4)]
            st["nm"] = tl.spread("sm", m, tl.pos() + 3 * early, tl.pos() + 20 * early, deps=[fr[15]["m"][-1]])[-1]
            return [] if early else h24(tl, seg)

        def h24(tl, seg):
            mx = st["mx"]
            sub = lambda p, j: [I(f"v_sub_f32 v{S(p, j, qb) + r}, v{S(p, j, qb) + r}, v{mx[qb]}") for qb in range(3) for r in range(4)]
            s10 = []
            if early:
                s10 = sub(1, 0)
                s10[0].deps = [fr[23]["m"][-1]]
            tl.spread("sm", sub(0, 0) + sub(0, 1) + s10 + self.softmax(0)[:-self.a.cut], tl.pos() - 4 * early, tl.pos())
            return [st["nm"]]
        hooks = {0: h0, 16: h16, 24: h24} if early else {0: h0, 16: h16}
        return self.segment(tl, F0, fr, hooks=hooks, upto=self.nh + self.sched[0], dwin=(0.0, 0.95))

    def final(self, tl):
        a = self.a
        fr = [self.vfrag(0, 0, db) for db in range(16)] + [self.vfrag(1, 1, db) for db in range(16)]
        pv = fr[16:]
        ls = [vL + qb for qb in range(3)]
        self.lfin = self.xlane(ls, "v_add_f32") + [f"v_rcp_f32 v{r}, v{r}" for r in ls]

        def h16(tl, seg):
            br, ladd = self.check(tl, 1, [fr[15]["m"][-1]], tl.pos())
            self.ladd = tl.spread("sm", ladd, tl.pos(), tl.pos() + 2)[-1]
            return [br]
        hooks = {0: self.sm_hook(31, end=lambda s: s["p1"] + 44, whole=True), 16: h16}
        if a.both:
            fr = [fr[16 * h + db] for db in range(16) for h in range(2)]

            def h0(tl, seg):
                self.sm_hook(31, end=lambda s: s["p1"], whole=True)(tl, seg)
                seg["bar"].target = seg["p1"]
                seg["bar"].deps.append(tl.streams["sm"][-a.both])
                br, ladd = self.check(tl, 2, [], seg["p1"])
                self.ladd = tl.spread("sm", ladd, tl.pos(), tl.pos() + 2)[-1]
                self.linv = tl.spread("sm", self.lfin, tl.pos() + 2, tl.pos() + 14)[-1]
                self.lfin = []
                return [fr[self.X]["ri"][-1], br]
            hooks = {0: h0}
        fix = [Lazy(self.die_check)] + II(f"""s_add_u32 s{sSt}, s{sSt}, s{sPv}
s_add_u32 s{sSt + 1}, s{sSt}, s{sPv}
s_add_u32 s{sSt + 2}, s{sSt + 1}, s{sPv}
v_add_u32 v{aW}, {self.slot(WO0) * 32768}, v255
v_xor_b32 v{aW + 1}, 32, v{aW}""")
        self.segment(tl, FL, fr, hooks=hooks, upd="",
                     upto=64, extra=self.tail_tokens(FL), first=fix, dwin=self.tail_win(FL))
        st = {}

        def oconv(tl, seg):
            for ks in range(8):
                f = pv[2 * ks + 1]
                for qb in range(3):
                    t = vE + 8 * ((ks * 3 + qb) & 1)
                    L = [f"v_accvgpr_read_b32 v{t + 4 * b + r}, a{O(2 * ks + b, qb) + r}" for b in range(2) for r in range(4)]
                    L += [f"v_cvt_pk_bf16_f32 v{QB(ks, qb) + i}, v{t + 2 * i}, v{t + 2 * i + 1}" for i in range(4)]
                    for x in L:
                        st[ks, qb] = tl.add("cv", x, f["pos"] + 6, deps=[f["m"][-1], self.ladd])
                        st[ks, qb].over = False
            for x in self.lfin:
                self.linv = tl.add("cv", x, seg["p1"])
            self.cvdone = st[7, 2]

        slots = []
        for nc in range(7):
            order = [(hs, db) for hs in range(2) for db in range(16)]
            if nc == 0:
                order = [(hs, 2 * ks + nb) for ks in range(8) for hs in range(2) for nb in range(2)]
            frags = [self.wfrag(hs, db, lambda qb, t=2 * nc + hs, db=db: R("v", ACC(t, qb, db & 1), 4),
                                lambda qb, db=db: R("v", QB(db >> 1, qb), 4), czero=(db < 2)) for hs, db in order]
            hooks = {}
            if nc == 0:
                def h0(tl, seg):
                    oconv(tl, seg)
                    for (hs, db), f in zip(order, frags):
                        f["needs"] = [[st[db >> 1, qb]] for qb in range(3)]
                    return []
                hooks = {0: h0}
            slots += [[f for (hs, db), f in zip(order, frags) if hs == h] for h in range(2)]
            pre, also = [], None
            if nc == 0:
                pre = [Lazy(lambda cnt: II(f"s_cmp_lg_u32 s{sFb}, 0\ns_cbranch_scc1 L_far\nL_near:"))] + II(f"v_mov_b32 v{vT}, 1\nv_lshrrev_b32 v{vT + 1}, {12 - a.fsh}, v{vLn}\nv_and_b32 v{vT + 1}, {15 << a.fsh}, v{vT + 1}")
                pre[1].deps = [self.ladd]
            if nc == 1:
                pre = II(f"""v_bfe_u32 v249, v{vLn}, 12, 4
v_lshrrev_b32 v250, 16, v{vLn}
v_mul_lo_u32 v248, s{sRb + 1}, v250
v_lshl_add_u32 v248, v249, 4, v248
v_add_u32 v248, s{sRb}, v248""")
            if nc == a.dflag:
                pre = II(f"buffer_store_dword v{vT}, v{vTd}, {srd(SRD_FLG)}, s{sMyF} offen sc1")
                also = lambda x: x.tag and x.tag[0] == "st" and a.ring[x.tag[1]] == "D"
            seg = self.segment(tl, WO0 + nc, frags, hooks=hooks, upd="W", last=(nc == 6), dwin=self.tail_win(WO0 + nc), first=pre,
                               extra=self.tail_tokens(WO0 + nc), also=also)
            if nc == a.dflag:
                dbar = seg["bar"]
        end = tl.pos()
        P0 = slots[0][0]["pos"]

        def either(text, tag=None, fl=""):
            x = I(text + fl, tag=tag)
            x.alt = text + " sc1"
            return x
        ring = [t for t in range(14) if a.ring[t] != "D"]
        eorder = list(range(14))
        if a.ring[0] == "D" and a.ring[1] != "D":
            eorder[:2] = [1, 0]
        rg, pub, ep_last, free, latest, stores = [], {}, {}, P0 + 96 + 3, [0], {}
        for t in eorder:
            step, k = self.role(t)
            add = step is not None and step > 0
            lo = max(P0 + 48 * (t + 1) + 3, free)
            ln = a.elen if add else a.elen0
            loads = []
            if add:
                r = ring.index(t)
                poll = f"buffer_load_dword v{vPoll}, off, {srd(SRD_FLG)}, s{sPrR + (step == 2)} sc1"

                def check(cnt, r=r, poll=poll):
                    self.spin(f"L_rs{r}", poll, vPoll, f"s_cmp_lt_u32 s{sPv}, {r - 2}", f"L_rb{r}")
                    return self.vwait(cnt, lambda x: f"v{vPoll}" in x.wr) + II(f"""v_readfirstlane_b32 s{sPv}, v{vPoll}
s_nop 0
s_cmp_lt_u32 s{sPv}, {r - 2}
s_cbranch_scc1 L_rs{r}
L_rb{r}:""")
                loads = [I(f"buffer_load_dwordx4 {R('v', IN(r, qb), 4)}, v{oSt}, {srd(SRD_GRP)}, s{sLo} offen offset:{qb * 1024} sc1" + " nt" * (step >= a.ntld)) for qb in range(3)]
                dep = [pub[r - 3], ep_last[ring[r - 3]], self.linv, self.cvdone]
                pl, ck = I(poll), Lazy(check)
                pl.after, ck.after = [(pub[r - 3], a.pmin)], [(pl, a.cmin)]
                early = latest[0] = max(pub[r - 3].when + a.pmin, latest[0])
                late = max(early, lo - a.lmin - a.cmin)
                tp = early + (late - early) * (a.pf if r < 11 else a.pfl)
                tc = tp + a.cmin + (late - tp) * a.cf
                latest[0] = tc + 7
                rg += [(tp, pl, [pub[r - 3]])]
                if a.hold and a.ring[t - 2] in "3D":
                    for x in stores[t - 2]:
                        x.deps.append(loads[-1] if a.hold == 2 else pl)
                if a.hold == 3 and a.ring[t - 1] in "3D":
                    for x in stores[t - 1]:
                        x.deps.append(loads[-1])
                rg += [(tc - 4 + i, x, []) for i, x in enumerate(self.col(t, sLo, 192, sSt + step - 1))]
                rg += [(tc, ck, dep)] + [(tc + 1 + 2 * qb, loads[qb], []) for qb in range(3)]
            pre = [I(f"s_add_u32 s{sSt0}, s{sD}, {k * HC}")] if step is None else self.col(t, sSt0, 192, sSt + step)
            tl.spread("st", pre, min(lo, end), min(lo + 4, end))
            L, marks = [], []
            for qb in range(3):
                b = ACC(t, qb, 0)
                if add:
                    w = Lazy(lambda cnt, r=IN(r, qb): self.vwait(cnt, lambda x: f"v{r}" in x.wr))
                    w.deps, w.vec_cost = [loads[qb]], 0
                    L.append(w)
                    for i in range(4):
                        x, u = IN(r, qb) + i, vU + (i & 1)
                        L += II(f"""v_lshlrev_b32 v{u}, 16, v{x}
v_and_b32 v{x}, 0xffff0000, v{x}
v_fma_f32 v{b + 2 * i}, v{b + 2 * i}, v{vL + qb}, v{u}
v_fma_f32 v{b + 2 * i + 1}, v{b + 2 * i + 1}, v{vL + qb}, v{x}""")
                else:
                    L += [I(f"v_mul_f32 v{b + i}, v{vL + qb}, v{b + i}") for i in range(8)]
                L += [I(f"v_cvt_pk_bf16_f32 v{b + i}, v{b + 2 * i}, v{b + 2 * i + 1}") for i in range(4)]
                marks.append(L[-1])
            tl.spread("ep", L, min(lo, end + 0.1), min(lo + ln, end + (0.9 if lo > end else 0)), deps=[slots[max(t, 1)][-1]["m"][-1], self.linv])
            for qb in range(3):
                txt = f"buffer_store_dwordx4 {R('v', ACC(t, qb, 0), 4)}, v{oSt}, {srd(SRD_GRP)}, s{sSt0} offen offset:{qb * 1024}"
                L.append(either(txt, ("st", t), " nt" * (step >= a.ntstep)) if step in (0, 1, 2) else I(txt + " " + a.stfl, tag=("st", t)))
                tl.add("st", L[-1], marks[qb].target + 0.001, deps=[marks[qb]])
            free = lo + ln
            stores[t] = L[-3:]
            ep_last[t] = marks[-1]
            if step is None and a.dflag < 7:
                dbar.deps.append(L[-1])
            if t + 4 < 14:
                for m in slots[t + 4][0]["m"]:
                    m.needs.append(L[-1])
            if step in (0, 1, 2):
                r = ring.index(t)
                fdel = a.fdel if step else a.fdel0
                when = lo + ln + fdel
                fs = either(f"buffer_store_dword v{vFlag}, v{vLn}, {srd(SRD_FLG)}, s{sMyR} offen")
                fs.when = when
                pub[r] = fs
                w = Lazy(lambda cnt, t=t: self.vwait(cnt, lambda x: x.tag == ("st", t)))
                w.after = [(L[-1], fdel)]
                for x, dep in ((I(f"v_mov_b32 v{vFlag}, {r + 1}"), []), (w, [L[-1]]), (fs, [])):
                    tl.add("fl", x, when - 1, deps=dep)
        rg += [(latest[0] + 1, I(f"buffer_load_dword v{vT + 2}, v{vT + 1}, {srd(SRD_FLG)}, 0 offen sc1"), [dbar])]
        for when, x, dep in sorted(rg, key=lambda y: y[0]):
            tl.add("rg", x, when, deps=dep)

    def reduce(self):
        a = self.a
        RB = lambda q, u: q * 16 + u * 4
        AC = lambda q, d: q * 8 + d * 4
        lds = lambda fl: [I(f"buffer_load_dwordx4 {R('a', RB(q, u), 4)}, v248, {srd(SRD_GRP)}, s{sRq + q} offen offset:{u * 256} {fl}") for q in range(4) for u in range(4)]
        pack = lambda q: [I(f"v_cvt_pk_bf16_f32 v{AC(q, 0) + k}, v{AC(q, 0) + 2 * k}, v{AC(q, 0) + 2 * k + 1}") for k in range(4)]
        mf = lambda q, u, acc, z: I(f"{MF} {R('v', AC(acc, u & 1), 4)}, {R('v', 220 + 4 * (u >> 1), 4)}, {R('a', RB(q, u), 4)}, " + ("0" if z and u < 2 else R("v", AC(acc, u & 1), 4)))

        def selectors():
            Z = II("""v_and_b32 v238, 1, v249
v_lshlrev_b32 v238, 4, v238
v_mov_b32 v239, 0x3f80
v_lshlrev_b32 v238, v238, v239
v_lshrrev_b32 v237, 1, v249""")
            for which in range(2):
                for d in range(4):
                    code = (d & 1) | (which << 1) | ((d >> 1) << 2)
                    Z += II(f"v_cmp_eq_u32 vcc, {code}, v237\nv_cndmask_b32 v{220 + 4 * which + d}, 0, v238, vcc")
            return Z
        publish = lambda n: II(f"""s_waitcnt vmcnt({n})
s_barrier
buffer_store_dword v{vFlag}, v{vTd}, {srd(SRD_FLG)}, s{sMyF} offen sc1""") + self.trace()
        poll = lambda nm, lv, go: II(f"""{nm}:
buffer_load_dword v{vT + 2}, v{vT + 1}, {srd(SRD_FLG)}, 0 offen sc1
s_waitcnt vmcnt(0)
v_cmp_gt_u32 vcc, {lv}, v{vT + 2}
s_nop 1
s_cbranch_vccz {go}
s_sleep {a.fsleep}
s_sub_u32 s{sSpin}, s{sSpin}, 1
s_cbranch_scc0 {nm}
s_endpgm""")
        L = II(f"""v_mov_b32 v{vFlag}, 2
s_cmp_lt_u32 s{sGw}, 24
s_cbranch_scc1 L_direct
v_mul_u32_u24 v231, 1792, v250
v_lshl_add_u32 v231, v249, 4, v231
v_add_u32 v233, s{sOo}, v231
v_mul_u32_u24 v229, 272, v249
v_lshl_add_u32 v229, v250, 4, v229
s_lshl_b32 s92, s{sW4}, 1
v_add_u32 v229, s92, v229
v_mul_u32_u24 v230, 272, v250
v_lshl_add_u32 v230, v249, 4, v230
v_add_u32 v230, s92, v230""") + selectors() + publish(0) + II(f"""s_cmp_ge_u32 s{sGw}, 60
s_cbranch_scc1 L_done""") + poll("L_poll", 2, "L_go") + [I("L_go:")] + (self.trace() if a.gtrace else []) + lds(a.rdfl)
        put = lambda q: pack(q) + [I(f"ds_write_b128 v229, {R('v', AC(q, 0), 4)} offset:{q * 64}")]
        for q in range(4):
            L += [I(f"s_waitcnt vmcnt({12 - 4 * q})")] + [mf(q, u, q, True) for u in range(4)]
            if q:
                L += put(q - 1)
        L += put(3) + [I(f"ds_read_b128 {R('v', 32 + 4 * q, 4)}, v230 offset:{q * 4 * 272}") for q in range(4)]
        for q in range(4):
            L += II(f"s_mov_b32 s92, {q * 4 * 1792}\ns_waitcnt lgkmcnt({3 - q})\nbuffer_store_dwordx4 {R('v', 32 + 4 * q, 4)}, v233, {srd(SRD_OUT)}, s92 offen {a.outfl}")
        L += [I("L_done:")]
        D = II(f"""L_direct:
v_mul_u32_u24 v231, 1792, v249
v_lshl_add_u32 v231, v250, 4, v231""") + selectors() + publish(0) + II(f"""v_cmp_gt_u32 vcc, 1, v{vT + 2}
s_nop 1
s_cbranch_vccnz L_dpoll
L_dgo:""") + (self.trace() if a.gtrace else []) + lds(a.ddfl)
        for q in range(4):
            D += [I(f"s_waitcnt vmcnt({12 - 4 * q})")] + [mf(q, u, 0, q == 0) for u in range(4)]
        D += pack(0) + II(f"buffer_store_dwordx4 v[0:3], v231, {srd(SRD_OUT)}, s{sOo} offen {a.outfl}\ns_branch L_done") + poll("L_dpoll", 1, "L_dgo")
        assert a.dflag < 6
        return L, D + self.ool

    def pack_muls(self, code):
        out, since, i = [], 99, 0
        while i < len(code):
            x = code[i]
            m = re.match(rf"v_mul_f32 v(\d+), s{sC}, ", x.text)
            if m and since >= 5 and int(m.group(1)) % 2 == 0 and code[i + 1].text.startswith(f"v_mul_f32 v{int(m.group(1)) + 1}, s{sC}, ") \
                    and not any(y.kind == "mfma" for y in code[i + 2:i + 5]):
                r = R("v", int(m.group(1)), 2)
                out.append(I(f"v_pk_mul_f32 {r}, {r}, s[{sC - 1}:{sC}] op_sel:[0,1] op_sel_hi:[1,1]"))
                i += 2
                since += 1
                continue
            since = 0 if x.kind == "mfma" else since + x.vec_cost
            out.append(x)
            i += 1
        return out

    def main_kernel(self):
        a = self.a
        pre = self.init()
        tl = Timeline(self.cnt)
        self.qproj(tl)
        seg = self.first(tl)
        u = 1
        while u < len(self.sched):
            seg = self.steady(tl, u, False)
            u += 1
        assert u & 1 and self.nh == 2 * u + a.lead, (u, self.nh)
        trips = (62 - self.nh) // 4
        trips = min(trips, (min(29, 31 - a.sprint) - u) // 2)
        ini = [f"s_add_u32 s{sCur}, s{sW4}, {self.slot(F0 + u) * 32768}", f"s_add_u32 s{sPrev}, s{sW4}, {self.nh % 10 * 16384}", f"s_mov_b32 s{sCnt}, {trips}"]
        tl.spread("dma", ini, seg["end"] - 6, seg["end"] - 1)
        pre += tl.run(a.look, a.pull, a.bias)
        if a.pk:
            pre = self.pack_muls(pre)
        pre += self.hop("L")
        if a.trace == 2:
            pre += [I("s_waitcnt lgkmcnt(0)")] + self.trace()
        count = lambda tl: tl.spread("dma", [f"s_sub_u32 s{sCnt}, s{sCnt}, 1", f"s_cmp_lg_u32 s{sCnt}, 0"], tl.pos() - 3, tl.pos() - 1)
        if not a.bal:
            tl = Timeline(self.cnt)
            self.steady(tl, u, True)
            self.steady(tl, u + 1, True)
            count(tl)
            body = [I(".p2align 6"), I("L_loop:")] + tl.run(a.look, a.pull, a.bias) + [I("s_cbranch_scc1 L_loop")]
            combos = [[body]]
        else:
            take = f"s_mov_b32 s{sRk}, 1\ns_atomic_add s{sRk}, s[{sTk}:{sTk + 1}], 4 glc"
            seg = {}
            for half in range(2):
                state = (self.fc, self.nh, list(self.tail), dict(self.buf_last), list(self.cnt.ds), list(self.cnt.vm), self.lastdma)
                for m, lo in (("S", a.slow), ("F", a.fast)):
                    self.fc, self.nh, self.lastdma = state[0], state[1], state[6]
                    self.tail, self.buf_last, self.cnt.ds, self.cnt.vm = list(state[2]), dict(state[3]), list(state[4]), list(state[5])
                    tk = []
                    if half == 0:
                        txt = take if m == "S" else f"s_cmp_lg_u32 s3, 0\ns_cbranch_scc1 L_notk\n{take}\nL_notk:"
                        tk = [Lazy(lambda cnt, txt=txt: II(txt)), I(f"s_add_u32 s{sRk + 1}, s{sRk + 1}, 8")]
                    tl = Timeline(self.cnt)
                    self.steady(tl, u + half, True, lo=lo, ticket=tk)
                    if half:
                        count(tl)
                    seg["AB"[half] + m] = [I(f"L_{'AB'[half]}{m}:")] + tl.run(a.look, a.pull, a.bias)
            pick = f"s_waitcnt lgkmcnt(0)\ns_cmp_ge_i32 s{sRk}, s{sRk + 1}\n"
            seg["AS"] = [I(".p2align 6")] + seg["AS"] + II(pick + "s_cbranch_scc1 L_BF")
            seg["BS"] += II("s_cbranch_scc1 L_AS\ns_branch L_exit")
            seg["AF"] += II(pick + "s_cbranch_scc0 L_BS")
            seg["BF"] += II("s_cbranch_scc1 L_AF\nL_exit:")
            pre += II("s_cmp_lg_u32 s3, 0\ns_cbranch_scc1 L_AF")
            combos = [[seg["A" + x], seg["B" + y]] for x in "SF" for y in "SF"]
        shift = 2 * (trips - 1)
        self.nh += 2 * shift
        self.cnt.vm = [I(x.text, tag=x.tag and (x.tag[0], x.tag[1] + shift)) for x in self.cnt.vm]
        tl = Timeline(self.cnt)
        for u in range(u + 2 * trips, 31):
            self.steady(tl, u, False)
        self.final(tl)
        post = tl.run(a.look, a.pull, a.bias, vlate=a.vlate) + self.trace()
        post += [I("L_join:")]
        red, some = self.reduce()
        post += red
        if a.trace:
            post += self.trace() + [I("s_waitcnt vmcnt(0)")] + self.trace()
            post += II(f"""s_add_u32 s48, s64, 0xc800000
s_addc_u32 s49, s65, 0
s_mov_b32 s50, 0x80000
s_mov_b32 s51, 0x20000
s_lshl_b32 s3, s2, 11
s_lshr_b32 s4, s{sW4}, 3
s_add_u32 s3, s3, s4
s_getreg_b32 s5, hwreg(HW_REG_XCC_ID)
v_writelane_b32 v252, s5, 63
v_lshrrev_b32 v235, 10, v{vLn}
buffer_store_dword v252, v235, s[48:51], s3 offen
buffer_store_dword v253, v235, s[48:51], s3 offen offset:256""")
        post += [I("L_end:"), I("s_endpgm")]
        nn = 0
        for c in combos:
            nn += fix_hazards([dict(code=x) for x in [pre] + c + c + [post]])
        for c in combos:
            verify_waits([dict(code=pre), dict(code=sum(c, []), count=trips, step=2), dict(code=post)])
        if a.bal:
            body = seg["AS"] + seg["BS"] + seg["AF"] + seg["BF"]
        fix_hazards([dict(code=some)])
        k0 = next(i for i, x in enumerate(post) if x.text == "L_near:")
        k1 = next(i for i, x in enumerate(post) if x.text == "L_join:")
        ren = lambda t: re.sub(r"L_r([sb])(\d+)", r"L_f\1\2", t)
        far = [I("L_far:")] + [I(ren(getattr(x, "alt", x.text))) for x in post[k0 + 1:k1]] + [I("s_branch L_join")]
        k2 = next(i for i, x in enumerate(some) if x.text.startswith("L_rs"))
        far += [I(ren(x.text)) for x in some[k2:]]
        slow = []
        for k, p in enumerate(self.slow_sites):
            slow += [I(f"L_slow{k}:"), I(f"s_call_b64 s[{sRet}:{sRet + 1}], L_rescale{p}"), I(f"s_branch L_back{k}")]
        for p in sorted(set(self.slow_sites)):
            r = self.slow_routine(p)
            fix_hazards([dict(code=r)])
            slow += r
        if a.v:
            print("nops", nn, "trips", trips, "stamps", sum(x.text.startswith("s_memtime") for x in pre + post), "body", stats(body))
            for nm, code in (("pre", pre), ("post", post)):
                segs, cur = [], []
                for x in code:
                    if x.kind == "bar":
                        segs.append(cur)
                        cur = []
                    cur.append(x)
                segs.append(cur)
                print(nm, "est cycles per segment:", [stats(s)[0] for s in segs])
        if a.pad:
            pre += [I("s_branch L_padded")] + [I("s_nop 0")] * (a.pad // 4) + [I("L_padded:")]
        if a.odrop:
            k0 = next(i for i, x in enumerate(post) if x.kind == "bar" and x.tag and x.tag[1] == WO0)
            k1 = next(i for i, x in enumerate(post) if x.text.startswith("L_join"))
            post = post[:k0] + [x for x in post[k0:k1] if not any(x.text.startswith(d) for d in a.odrop.split(","))] + post[k1:]
        if a.ldrop:
            body = [x for x in body if not any(x.text.startswith(d) for d in a.ldrop.split(","))]
        return self.place_pads(pre + body + post + some + [I("L_last:")] + far + slow)


def text(code, drop=()):
    code = [x for x in code if not any(x.text.startswith(d) for d in drop)]
    return "".join(("" if x.kind == "label" else "    ") + x.text.rstrip() + "\n" for x in code)


HEADER = """;
; LDS is a ring of five 32-KB slots filled by LDS-DMA with the bank swizzle on the source addresses.
;   1. Q^T = Wq^T x^T, scaled by log2(e)/16 and rounded to bf16 (stays in VGPRs as B operands).
;   2. Flash attention over 32-key tiles: stage u runs QK(u+1), PV(u-1) and softmax(u). The row reference
;      starts as the true max of tile 0 and enters QK as the C operand; a tile whose row sum passes 4096
; Flags live in d_ws, are cleared at entry, and are trusted only after the group's d_debug counter is full.
; L_pad*: first line of each 4-KB code page, visited early with EXEC = 0 to warm the instruction cache.
"""


def build(a):
    g = Gen(a)
    nm = NAME + "_kernel"
    s = "".join(l for l in open(f"cdna_kernels/{NAME}.s.ref") if l.startswith(";   offset") or l.startswith("; Kernarg"))
    s += "; @launch grid=(256,1,1) block=(256,1,1) lds=163840\n"
    s += HEADER
    s += '.amdgcn_target "amdgcn-amd-amdhsa--gfx950"\n.text\n'
    s += f".globl {nm}\n.p2align 12\n.p2align 8\n.type {nm},@function\n{nm}:\n" + text(g.main_kernel(), a.drop.split(",") if a.drop else ())
    s += f""".section .rodata,"a"
.p2align 6
.amdhsa_kernel {nm}
  .amdhsa_next_free_vgpr 512
  .amdhsa_next_free_sgpr 102
  .amdhsa_accum_offset 256
  .amdhsa_group_segment_fixed_size 0
  .amdhsa_kernarg_size 104
  .amdhsa_user_sgpr_count 2
  .amdhsa_user_sgpr_kernarg_segment_ptr 1
  .amdhsa_system_sgpr_workgroup_id_x 1
.end_amdhsa_kernel
"""
    return s


def parser():
    ap = argparse.ArgumentParser()
    ap.add_argument("-o", default="k.s")
    ap.add_argument("-v", action="store_true")
    for k, v in dict(rmul=0, rsh=3, X=5, Y=3, cut=10, look=10, nq=5, tb=4, t0=2, lead=3, wofast=4, wotouch=30,
                     ws=0, serp=1, grp=4, ctouch=1, trace=0, itrace=0, i0=2, flagstride=4352, pollsleep=2, hold=3, pre=1, fsh=5, bal=0, bthr=4, both=12, gtrace=0, fsleep=2, ntld=4, ntstep=3, joint=1, early=0, pk=1, kmaj=0, gray=0, krot=1, lastbar=5, pad=0, map=0, sprint=2, slead=3, ltouch=0, dflag=4, elen=47, elen0=28, fdel=16, fdel0=34, lmin=30, forcefb=0, vlate=3, pmin=14, cmin=18).items():
        ap.add_argument("--" + k, type=int, default=v)
    for k, v in dict(thr=4096.0, dmaspan=0.95, pull=3.0, bias=0.0, pf=1.0, pfl=0.3, cf=0.0, dmalo=0.18, slo=0.0, slow=0.4, fast=0.0).items():
        ap.add_argument("--" + k, type=float, default=v)
    for k, v in dict(kvfl="nt", wfl="", stfl="sc1", rdfl="sc1", ddfl="sc1", outfl="nt", drop="", ldrop="", odrop="", wo29="", hops="0,L", hopn="5,16", ring="DD000111222333", wos="O|...PP|PP,,,RR||PP|P", sched="3,1,1",
                     qs="WW||T|.......X|QQX|QQT||XQ|QX|QQT||XQ|QX|QQH|H|H|H").items():
        ap.add_argument("--" + k, default=v)
    return ap


if __name__ == "__main__":
    a = parser().parse_args()
    txt = build(a)
    open(a.o, "w").write(txt)
```

```python
import argparse, re, struct
from asmlib import *

NAME = "concat_heads__mha_block_cached__gqa_block_cached__near_ridge"
f32 = lambda x: hex(struct.unpack("<I", struct.pack("<f", x))[0])

SRD_X, SRD_WQ, SRD_K, SRD_V, SRD_WO = 8, 12, 16, 20, 24
SRD_GRP, SRD_FLG, SRD_DBG, SRD_OUT = 68, 72, 80, 84
sMyR, sPrR, sMyF, sIds, sTo = 28, 60, 30, 31, 44
sPc, sSt, sD, sFb, sLo, sPv, sXcc, sSpin = 52, 56, 63, 76, 78, 79, 97, 67
sW4, sK, sV, sT0, sT1, sCur, sPrev, sDelta, sPos, sNeg, sCnt, sC = 32, 33, 34, 35, 36, 37, 38, 39, 40, 41, 42, 43
sSt0, sT2, sRet, sGw, sX2 = 4, 5, 6, 66, 29
sRq, sRb, sOo, sW8 = 88, 46, 62, 37
aK, aV, oK, oV, oWq, oWo, oSt = 192, 196, 204, 206, 208, 210, 212
vL, vT, aX, vE, vX, vTmp, vNm = 213, 216, 219, 220, 228, 232, 240
FRAG0 = 192
vCp = 254
aW = 194
LA, vOne = (168, 172, 176), 228
aU = (217, 218, 234, 235)
vTw = 232
MF = "v_mfma_f32_16x16x32_bf16"
srd = lambda s: f"s[{s}:{s + 3}]"
S = lambda p, j, qb: 24 + p * 48 + (j * 3 + qb) * 4
P = lambda p, qb: 120 + p * 12 + qb * 4
O = lambda db, qb: (db * 3 + qb) * 4
QA = lambda db, qb: ((db >> 1) * 3 + qb) * 8 + (db & 1) * 4
QB = lambda ks, qb: 48 * (ks >> 1) + 12 * (ks & 1) + 4 * qb
XB = lambda ks, qb: (220, 224, 236, 240, 244, 248)[(ks & 1) * 3 + qb]
ACC = lambda t, qb, nb: 24 + 48 * (t & 3) + qb * 8 + nb * 4
IN = lambda r, qb: (220, 232, 196)[r % 3] + 4 * qb
vLn, vTd, vPoll, vFlag, vU = 208, 209, 244, 245, 246
NW, F0, FL, WO0, NEND = 14, 14, 45, 46, 52
HC = 12288
DSTR, QSTR, FBASE, RBASE, GSTR = 7 * 4096, 37 * 4096, 0x70000, 0x110000, 865 * 4096
FLAGOFF = 16 * GSTR


def II(txt):
    return [I(x) for x in txt.strip().split("\n")]


class Gen:
    def __init__(self, a):
        self.a = a
        self.cnt = Counters()
        self.fc = 0
        self.buf_last = {}
        self.tail = []
        self.slow_sites = []
        self.X, self.Y = a.X, a.Y
        self.nh = 0
        self.lastdma = None
        self.sched = [int(x) for x in a.sched.split(",")]
        self.qs = a.qs.split("|")
        assert len(self.qs) == 17
        self.nw = self.nx = self.nt = 0
        self.ool = []
        self.wdone = set()
        self.nr = self.nhop = self.flip = 0
        self.wos = a.wos.split("|")

    def slot(self, n):
        nq = self.a.nq
        if n >= WO0:
            return (4, 0, 2, 1, 3)[(n - WO0) % 5]
        return 5 - nq + (n - NW) % nq if n < NW else (0, 2, 1, 3)[(n - F0) % 4]

    def ndma(self, n):
        return 7 if n < NW else 8

    def dma(self, n, voff, s, soff, imm, fl):
        fl = (fl + " ") if fl else ""
        return I(f"buffer_load_dwordx4 v{voff}, {srd(s)}, s{soff} offen offset:{imm} {fl}lds", tag=("fill", n))

    def half_kv(self, n, kind):
        s, vo, so = (SRD_K, oK, sK) if kind == "K" else (SRD_V, oV, sV)
        L = [self.dma(n, vo + x, s, so, x * 2048 + j * 1024, self.a.kvfl) for j in range(2) for x in range(2)]
        if self.a.pg:
            return [], L[:2] + [I(f"s_add_u32 s{so}, s{so}, 3072")] + L[2:] + [I(f"s_add_u32 s{so}, s{so}, {0x4000 - 3072}")]
        hole = 3 << (12 + self.a.ws)
        L += [I(f"s_add_u32 s{so}, s{so}, {hex(0x1000 + hole)}")]
        if self.a.ws or self.a.rmul:
            L += [I(f"s_and_b32 s{so}, s{so}, {hex(0x7ffff & ~hole)}")]
        return [], L

    def half_w(self, n, s, vo, offs):
        pre = [I(f"s_mov_b32 s{sT0}, {offs[0]}"), I(f"s_mov_b32 s{sT1}, {offs[1]}")]
        return pre, [self.dma(n, vo + x, s, (sT0, sT1)[j], x * 2048 + j * 1024, self.a.wfl) for j in range(2) for x in range(2)]

    def role(self, t):
        c = self.a.ring[t]
        k = self.a.ring[:t].count(c)
        return (None, k) if c == "D" else (int(c), (k + self.a.krot) % 3)

    def col(self, t, dst, scale, base):
        st, k = self.role(t)
        if st is None:
            c = (768 + 64 * k) * scale
            return [I(f"s_mov_b32 s{dst}, {c}" if base is None else f"s_add_u32 s{dst}, s{base}, {c}")]
        L = [I(f"s_mul_i32 s{dst}, s{sPc + st}, {(128 if k else 64) * scale}"), I(f"s_add_u32 s{dst}, s{dst}, {(64 * (k - 1) if k else 512) * scale}")]
        return L + ([] if base is None else [I(f"s_add_u32 s{dst}, s{dst}, s{base}")])

    def wo_items(self, n, count):
        L = []
        for _ in range(count):
            todo = [t for t in range(14) if t not in self.wdone]
            if not todo or WO0 + (todo[0] >> 1) - 4 > n:
                break
            st, k = self.role(todo[0])
            want = (None, k ^ 1) if st is None else (st ^ 1, 0) if k == 0 else (st, 3 - k)
            ts = [todo[0]] + [t for t in todo[1:] if self.role(t) == want and WO0 + (t >> 1) - 4 <= n]
            regs = [(sT0, sT1), (92, 93)]
            for t, r in zip(ts, regs):
                L += self.col(t, r[0], 1, None) + [I(f"s_add_u32 s{r[1]}, s{r[0]}, {16 * 896 - 1024}")]
            for j in range(2):
                for x in range(2):
                    for t, r in zip(ts, regs):
                        m = WO0 + (t >> 1)
                        L += [I(f"s_add_u32 m0, s{sW4}, {self.slot(m) * 32768 + (t & 1) * 16384}"), self.dma(m, oWo + x, SRD_WO, r[j], x * 2048 + j * 1024, self.a.wfl)]
            self.wdone.update(ts)
            if self.a.v:
                print('seg', n - WO0, 'wo', ts)
        return L

    def fill_halves(self, n):
        H = []
        for hs in range(2):
            if n < NW and hs == 0:
                pre = [I(f"s_mov_b32 s{sT2}, {n * 64}")]
                d = [self.dma(n, vX + qb, SRD_X, sT2, qb * 1024, self.a.wfl) for qb in range(3)]
            elif n < NW:
                pre, d = self.half_w(n, SRD_WQ, oWq, [n * 262144 + j * (32768 - 1024) for j in range(2)])
            else:
                pre, d = self.half_kv(n, "KV"[(n - F0) & 1])
            m0 = f"s_add_u32 m0, s{sW4}, {self.slot(n) * 32768 + hs * 16384}"
            if n < NW and hs:
                m0 = f"s_add_u32 m0, s{sW8}, {self.slot(n) * 32768 + 16320}"
            H.append((m0, pre, d))
        return H

    def fill(self, n):
        L = []
        for m0, pre, d in self.fill_halves(n):
            L += [I(m0)] + pre + d
        return L

    def halves(self, n, upto):
        L = []
        while self.nh < min(upto, 64):
            h = self.nh
            m = F0 + (h >> 1)
            prev = m - 4 if m - 4 >= F0 else max(k for k in range(NW) if self.slot(k) == self.slot(m))
            assert prev < n, (n, h)
            m0, pre, d = self.fill_halves(m)[h & 1]
            L += [I(m0)] + pre + d
            self.nh += 1
        return L

    def at(self, n, reg, hs):
        sl = self.slot(n)
        return reg, (sl & 1) * 32768 + hs * 16384

    def kfrag(self, n, hs, p, j, ks, czero=False):
        r, o = self.at(n, aK + (ks & 3), hs)
        rd = [lambda b: f"ds_read_b128 {R('a', b, 4)}, v{r} offset:{o + j * 1024 + (ks >> 2) * 256}"]
        init = None if ks else (lambda qb: "0" if czero else R("v", vNm + qb * 4, 4))
        return dict(rd=rd, dst=lambda qb: R("v", S(p, j, qb), 4), bop=lambda qb: R("v", QB(ks, qb), 4), init=init, key=("k", j), size=self.a.gk)

    def tfrag(self, hs, db, dst, bop, czero=False):
        rd = [lambda b, j=j: f"ds_read_b64_tr_b16 {R('a', b + 2 * j, 2)}, v{aV + (db & 7)} offset:{hs * 16384 + j * 1024 + (db >> 3) * 256}" for j in range(2)]
        return dict(rd=rd, dst=dst, bop=bop, init=(lambda qb: "0") if czero else None, key=bop(0), size=self.a.gv)

    def wfrag(self, hs, db, dst, bop, czero=False):
        f = self.tfrag(hs, db, dst, bop, czero)
        f["rd"] = [lambda b, j=j: f"ds_read_b64_tr_b16 {R('a', b + 2 * j, 2)}, v{aW + (db & 1)} offset:{hs * 16384 + (db >> 1) * 2048 + j * 1024}" for j in range(2)]
        return f

    def ufrag(self, i, db, dst, bop, czero=False):
        f = self.tfrag(0, db, dst, bop, czero)
        f["rd"] = [lambda b, j=j: f"ds_read_b64_tr_b16 {R('a', b + 2 * j, 2)}, v{aU[db >> 1 & 3]} offset:{i * 32768 + (db >> 3) * 256 + j * 1024 + (db & 1) * 8}" for j in range(2)]
        return f

    def vfrag(self, n, hs, p, db):
        f = self.tfrag(hs, db, lambda qb: R("a", O(db, qb), 4), lambda qb: R("v", P(p, qb), 4))
        r, o = self.at(n, aV + (db & 7), hs)
        f["rd"] = [lambda b, j=j: f"ds_read_b64_tr_b16 {R('a', b + 2 * j, 2)}, v{r} offset:{o + j * 1024 + (db >> 3) * 256}" for j in range(2)]
        return f

    def trace(self):
        if not self.a.trace:
            return []
        return II("""s_memrealtime s[98:99]
s_memtime s[100:101]
s_lshl_b64 exec, 1, s96
s_add_u32 s96, s96, 1
s_waitcnt lgkmcnt(0)
v_mov_b32 v252, s98
v_mov_b32 v253, s100
s_mov_b64 exec, -1""")

    def leak(self, mark):
        m = self.a.leak.split(",")
        L = []
        for k in range(2):
            if len(m) == 3 and m[k] == str(mark):
                L += II(f"s_waitcnt lgkmcnt(0)\ns_memrealtime s[{98 + 2 * k}:{99 + 2 * k}]\ns_waitcnt lgkmcnt(0)")
        return L

    def hop(self, n):
        if str(n) not in self.a.hops.split(","):
            return []
        k = self.nhop
        self.nhop += 1
        L = ["s_mov_b64 exec, 0"]
        for w in range(3):
            L += [f"s_cmp_eq_u32 s3, {w}", f"s_cbranch_scc1 L_hop{k}_{w}"]
        return [I(x) for x in L + [f"s_branch L_hop{k}_3", f"L_hopped{k}:", "s_mov_b64 exec, -1"]]

    def place_pads(self, code):
        k0 = next(i for i, x in enumerate(code) if x.text == "L_page0:")
        k1 = next(i for i, x in enumerate(code) if x.text == "L_last:")
        stubs = "".join(f"L_hop{k}_{w}:\n" for k in range(self.nhop) for w in range(4))
        sz = sizes(code, '.amdgcn_target "amdgcn-amd-amdhsa--gfx950"\n.text\n' + stubs)
        at, page, pads, src = 0, 1, [], {}
        i = k0
        while i < k1:
            x = code[i]
            if x.text.startswith("L_hopped"):
                src[int(x.text[8:-1])] = len(pads)
            if x.text.startswith(".p2align"):
                al = 1 << int(x.text.split()[1])
                at = -(-at // al) * al
            if at >= page * 4096:
                good = code[i - 1].kind == "mfma" and not x.scalar
                if good or at + sz[i] > page * 4096 + 48:
                    pads.append(i)
                    at += 4
                    page += 1
            at += sz[i]
            i += 1
        counts = [int(c) for c in self.a.hopn.split(",")]
        label, target, nxt = {}, {}, 0
        for k in range(self.nhop):
            nxt = max(nxt, src[k])
            mine = list(range(nxt, min(nxt + counts[k], len(pads))))
            nxt += len(mine)
            for w in range(4):
                ch = mine[w::4]
                if not ch:
                    label.setdefault(("h", k), []).append(f"L_hop{k}_{w}:")
                    continue
                label.setdefault(ch[0], []).append(f"L_hop{k}_{w}:")
                for p, q in zip(ch, ch[1:] + [None]):
                    target[p] = f"L_pad{q}" if q is not None else f"L_hopped{k}"
        out = []
        for i, x in enumerate(code):
            if x.text.startswith("L_hopped"):
                out += [I(l) for l in label.get(("h", int(x.text[8:-1])), [])]
            if i in pads:
                p = pads.index(i)
                out += [I(l) for l in label.get(p, [])] + [I(f"L_pad{p}:"), I(f"s_cbranch_execz {target[p]}" if p in target else "s_nop 0")]
            out.append(x)
        if self.a.v:
            print("pages", len(pads), "warmed", len(target), "sources", src)
        return out

    def put_group(self, tl, fs, needs=()):
        qs = [2, 1, 0] if self.flip else [0, 1, 2]
        self.flip ^= 1
        for x in fs:
            x["m"] = []
        for i, q in enumerate(qs):
            init = {x["dst"](q): x["init"](q) for x in fs if x["init"]}
            for x in (fs[::-1] if i & 1 else fs):
                d = x["dst"](q)
                x["pos"] = tl.pos() - 2
                x.setdefault("first", tl.pos())
                x["m"].append(tl.mfma(f"{MF} {d}, {R('a', x['buf'], 4)}, {x['bop'](q)}, {init.pop(d, d)}",
                                      needs=list(x["ri"]) + list(needs) + list(x.get("needs", [[], [], []])[q])))
        for x in fs:
            self.buf_last[x["buf"]] = x["m"][-1]
            if "more" in x:
                x["mm"] = [tl.mfma(m, needs=x["mneeds"]) for m in x["more"]]

    def groups(self, fs, cuts=()):
        out = []
        for i, f in enumerate(fs):
            if out and i not in cuts and f["key"] == out[-1][1][0]["key"] and len(out[-1][1]) < f["size"]:
                out[-1][1].append(f)
            else:
                out.append((i, [f]))
        return out

    def segment(self, tl, n, frags, hooks=None, dyn=False, upd="", last=False, fills=(), upto=0, extra=(), dwin=None, also=None, first=(), upto_fill=None, notail=False, pace=None):
        hooks = hooks or {}
        X, Y = self.X, self.Y
        p0 = tl.pos()
        st = [] if ((dyn and self.a.trace == 2) or (self.a.trace == 3 and n != WO0)
                    or (self.a.trace == 4 and n not in (F0, WO0)) or (self.a.trace == 6 and n < FL - 1) or (self.a.trace == 7 and (n <= F0 or n > FL or n % 2 == 0))
                    or (self.a.trace == 5 and (dyn or n % 2 or n > F0 + 2) and n not in (F0 + 1, FL, WO0))) else self.trace()

        st = st + ([] if dyn else self.leak(n))
        nhi = NEND if n == WO0 + self.a.lastbar else upto_fill or n

        def barrier(cnt):
            if n > WO0 + self.a.lastbar:
                return st and [I("s_waitcnt lgkmcnt(0)")] + st
            v = 4 * (self.a.lead - 2) if dyn else cnt.need(cnt.vm, lambda x: x.tag and (x.tag[0] == "fill" and n <= x.tag[1] <= nhi or (also and also(x))))
            w = "s_waitcnt " + (f"vmcnt({v}) " if v is not None else "") + "lgkmcnt(0)"
            dip = [I(f"s_sleep {self.a.dipn}")] if n == self.a.dip else []
            return self.hop(n) + dip + [I(w), I("s_barrier", tag=("bar", n, self.ndma(n), nhi))] + st
        bar = tl.add("rd", Lazy(barrier), p0, deps=[self.lastdma] if self.lastdma else [])
        tail, self.tail = self.tail, []
        base = p0 + 3 * (len(tail) - X) - (self.a.rlead if notail else 0)
        nf = len(frags)
        for i, f in enumerate(frags):
            f["buf"] = FRAG0 + 4 * (self.fc % 16)
            self.fc += 1
            f["ri"] = [I(x) for x in f.get("pre", [])] + [I(r(f["buf"])) for r in f["rd"]]
        for _, g in self.groups(tail):
            self.put_group(tl, g)
        seg = dict(p0=p0, p1=tl.pos(), bar=bar, tail=tail, end=p0 + 3 * (len(tail) + nf + 2 * sum("more" in f for f in frags) - (0 if last or notail else X)))
        if n >= WO0 + self.a.lastbar or notail:
            Y = 1
        span = 3.0 * (nf - Y) / nf
        for i, f in enumerate(frags):
            for k, r in enumerate(f["ri"]):
                tl.add("rd", r, base + span * (i + k / len(f["ri"])))
        for f in frags:
            if f.get("late"):
                for r in f["ri"][:3]:
                    tl.streams["rd"].remove(r)
                    tl.add("rx", r, seg["p1"], deps=[bar, tail[-1]["m"][-1]])
        nhead = nf if last or notail else nf - X
        for i, g in self.groups(frags, set(hooks) | {nhead}):
            for f in g:
                if self.buf_last.get(f["buf"]) is not None:
                    f["ri"][0].deps.append(self.buf_last[f["buf"]])
            if i < nhead:
                self.put_group(tl, g, hooks[i](tl, seg) if i in hooks else [])
            else:
                self.tail += g
        nxt = 1e9
        for i, f in reversed(list(enumerate(frags))):
            use = f.get("first", seg["end"] + i - nhead)
            for r in reversed(f["ri"]):
                if r.stream == "rd" and self.a.minlead:
                    nxt = r.target = min(r.target, use - self.a.minlead, nxt - 1)
        if not last:
            regs = ([aX] if "X" in upd else []) + ([aK + i for i in range(4)] if "K" in upd else []) + ([aV + i for i in range(8)] if "V" in upd else []) + ([aW, aW + 1] if "W" in upd else []) + (list(aU) if "U" in upd else [])
            dl = (self.slot((upto_fill or n) + 1) - self.slot(n)) * 32768
            ups = [I(f"v_add_u32 v{r}, {hex(dl & 0xffffffff)}, v{r}") for r in regs]
        if first:
            tl.spread("dma", first, p0 + 1, p0 + 1 + 1.5 * len(first), deps=[bar])
            self.lastdma = first[-1]
        fl = []
        for m in fills:
            fl += self.fill(m)
        fl += self.halves(n, upto) + list(extra)
        if fl:
            lo, hi = dwin or (self.a.dmalo, self.a.dmaspan)
            tl.spread("dma", fl, p0 + 1 + (seg["end"] - p0) * lo, p0 + 1 + (seg["end"] - p0) * hi, deps=[bar])
            self.lastdma = fl[-1]
            dm = [x for x in fl if x.kind == "vmem"]
            if pace:
                b, e, z = pace[0] * 96, pace[1] * 96, seg["end"] - p0 - 4
                ps = [b + (e - b) * i / 3 for i in range(4)] + [e + (z - e) * (i + 1) / (len(dm) - 4) for i in range(len(dm) - 4)]
                nxt = seg["end"] - 2
                for x in reversed(fl):
                    if x.kind == "vmem":
                        nxt = p0 + ps[dm.index(x)]
                        x.target = nxt
                    else:
                        nxt = x.target = max(p0 + 1, min(nxt, seg["end"] - 2) - 1.5)
        if not last:
            tl.spread("rd", ups, seg["end"] - 3 * Y, seg["end"] - 1)
        return seg

    def softmax(self, blocks=None):
        blocks = blocks or [(p, j, qb) for p in range(2) for j in range(2) for qb in range(3)]
        L, post = [], []
        for bi, (p, j, qb) in enumerate(blocks):
            e = vE + 4 * (bi & 1)
            for r in range(4):
                L.append(I(f"v_exp_f32 v{e + r}, v{S(p, j, qb) + r}"))
                L[-1].blk = None if r else (p, j, qb)
                L += post[:2] if r == 0 else post[2:] if r == 2 else []
            d = P(p, qb) + 2 * j
            post = II(f"v_cvt_pk_bf16_f32 v{d}, v{e}, v{e + 1}\nv_cvt_pk_bf16_f32 v{d + 1}, v{e + 2}, v{e + 3}\n"
                      f"v_or3_b32 v{vT}, v{d}, v{d + 1}, " + (f"v{vT}" if bi else "0"))
        return L + post + II(f"v_and_b32 v{vTmp}, 0x40004000, v{vT}\nv_cmp_ne_u32 vcc, 0, v{vTmp}")

    def put_softmax(self, tl, p0, floor=0):
        done = {}
        for k in range(p0, tl.pos()):
            done[tl.mf[k].wr[0]] = k
        order = sorted(((p, j, qb) for p in range(2) for j in range(2) for qb in range(3)), key=lambda b: done[f"v{S(*b)}"])
        t = floor
        for x in self.softmax(order):
            dep = []
            if getattr(x, "blk", None):
                k = done[f"v{S(*x.blk)}"]
                t, dep = max(t, min(k + 1 + self.a.smlag, tl.pos())), [tl.mf[k]]
            tl.add("sm", x, t, deps=dep)

    def check(self, tl, p, after, target):
        k = len(self.slow_sites)
        self.slow_sites.append(p)
        br = tl.add("sm", Lazy(lambda cnt: [I(f"s_cbranch_vccnz L_slow{k}"), I(f"L_back{k}:")]), target, deps=after)
        return br

    def xlane(self, regs, op):
        L = []
        for sw in ("v_permlane16_swap_b32", "v_permlane32_swap_b32"):
            L += [f"v_mov_b32 v{vTmp + 4 + i}, v{r}" for i, r in enumerate(regs)]
            L += [f"{sw} v{r}, v{vTmp + 4 + i}" for i, r in enumerate(regs)]
            L += [f"{op} v{r}, v{r}, v{vTmp + 4 + i}" for i, r in enumerate(regs)]
        return L

    def tilemax(self, ps):
        L, mx = [], [vTmp + 1 + qb for qb in range(3)]
        for step in range(4 * len(ps)):
            for qb in range(3):
                v = [S(p, j, qb) + r for p in ps for j in range(2) for r in range(4)]
                if step == 0:
                    L.append(f"v_max_f32 v{mx[qb]}, v{v[0]}, v{v[1]}")
                else:
                    L.append(f"v_max3_f32 v{mx[qb]}, v{mx[qb]}, v{v[2 * step]}, v{v[2 * step + 1]}")
        return L + self.xlane(mx, "v_max_f32"), mx

    def slow_routine(self, p):
        L = [f"L_rescale{p}:", "s_nop 15"]
        m, mx = self.tilemax((0, 1))
        L += m
        L += [f"v_add_f32 v{r}, {f32(self.a.tref)}, v{r}" for r in mx]
        L += [f"v_max_f32 v{r}, 0, v{r}" for r in mx]
        for qb in range(3):
            L += [f"v_sub_f32 v{vNm + qb * 4 + r}, v{vNm + qb * 4 + r}, v{mx[qb]}" for r in range(4)]
            for pp in range(2):
                for j in range(2):
                    L += [f"v_sub_f32 v{S(pp, j, qb) + r}, v{S(pp, j, qb) + r}, v{mx[qb]}" for r in range(4)]
        L += [f"v_exp_f32_e64 v{r}, -v{r}" for r in mx]
        L += [f"v_mul_f32 v{LA[qb]}, v{LA[qb]}, v{mx[qb]}" for qb in range(3)]
        for db in range(16):
            for qb in range(3):
                L += [f"v_accvgpr_read_b32 v{vE + r}, a{O(db, qb) + r}" for r in range(4)]
                L += [f"v_mul_f32 v{vE + r}, v{vE + r}, v{mx[qb]}" for r in range(4)]
                L += [f"v_accvgpr_write_b32 a{O(db, qb) + r}, v{vE + r}" for r in range(4)]
        L = [I(x) for x in L] + self.softmax()[:-2]
        return L + [I("s_nop 3"), I(f"s_setpc_b64 s[{sRet}:{sRet + 1}]")]

    def upto(self, u):
        return self.nh + self.sched[u] if u < len(self.sched) else 2 * u + 2 + self.a.lead

    def paced(self, u, b, e):
        return dict(pace=(b, e)) if self.nh <= 2 * u + self.a.lead else dict(dwin=(0.05, 0.9))

    def seg_qk(self, tl, u, dyn):
        a = self.a
        frags = [self.kfrag(F0 + u, p, p, j, ks) for p in range(2) for j in range(2) for ks in range(8)]
        extra = []
        if u == 30:
            extra = [Lazy(self.dbg_check)] + II(f"""buffer_load_dword v218, v214, {srd(SRD_FLG)}, s{sIds} offen sc1""") + self.tail_tokens(F0 + u)
        seg = self.segment(tl, F0 + u, frags, dyn=dyn, upto=self.upto(u), extra=extra, notail=True, **self.paced(u, a.vbeg, a.vend))
        self.put_softmax(tl, seg["p1"])
        return seg

    def seg_pv(self, tl, u, dyn, hooks=None, **kw):
        a = self.a
        fr = [self.vfrag(F0 + u, h, h, db) for db in range(16) for h in range(2)]
        for i, f in enumerate(fr):
            f["key"], f["size"] = i >> 1, a.gf
            if u == 1 and not i & 1 and i < 32 - self.X:
                f["init"] = lambda qb: "0"
        fr[1]["more"] = [f"{MF} {R('v', LA[qb], 4)}, {R('v', vOne, 4)}, {R('v', P(p ^ (qb & 1), qb), 4)}, " + ("0" if u == 1 and p == 0 else R("v", LA[qb], 4))
                         for qb in range(3) for p in range(2)]
        fr[1]["mneeds"] = [self.ones]

        def h0(tl, seg):
            seg["bar"].deps.append(tl.streams["sm"][-a.both])
            self.ladd = self.check(tl, 0, [], seg["p1"])
            return [fr[self.X + 1]["ri"][-1], self.ladd]
        if u == 1:
            kw["extra"] = II(f"""buffer_load_dword v239, off, {srd(SRD_DBG)}, 0 sc1
v_mbcnt_lo_u32_b32 v213, -1, 0
v_mbcnt_hi_u32_b32 v213, -1, v213
v_lshlrev_b32 v{vLn}, 12, v213
v_lshlrev_b32 v{vTd}, 12, v{oSt}
v_and_b32 v214, 3, v213
v_lshlrev_b32 v214, {a.fsh}, v214""")
            kw["first"], kw["extra"] = kw["extra"], []
        if u < 31:
            kw.update(upto=self.upto(u), **self.paced(u, a.wbeg, a.wend))
        self.pvf = fr
        return self.segment(tl, F0 + u, fr, hooks={**(hooks or {}), 0: h0}, dyn=dyn, **kw)

    def tail_win(self, n):
        t = self.wos[n - FL + 1] if n - FL + 1 < len(self.wos) else ""
        return 0.1 * t.count("."), 0.92 - 0.1 * t.count(",")

    def tail_tokens(self, n, toks=None):
        L = []
        if toks is None:
            toks = self.wos[n - FL + 1] if n - FL + 1 < len(self.wos) else ""
        for c in toks:
            if c == "P":
                L += self.wo_items(n, 1)
            elif c == "O":
                L += II(f"buffer_load_dword v{aX}, v215, {srd(SRD_WO)}, s{sTo} offen")
            elif c == "R":
                L += II(f"buffer_load_dword v{192 + self.nr}, v{vCp}, {srd(SRD_GRP)}, s{sTo + 1} offen\ns_add_u32 s{sTo + 1}, s{sTo + 1}, {36 * 128}")
                self.nr += 1
        return L

    def vwait(self, cnt, pred):
        v = cnt.need(cnt.vm, pred)
        return [] if v is None else [I(f"s_waitcnt vmcnt({min(v, 63)})")]

    def spin(self, nm, load, reg, test, back):
        self.ool += II(f"""{nm}:
s_sleep {self.a.pollsleep}
{load}
s_waitcnt vmcnt(0)
v_readfirstlane_b32 s{sPv}, v{reg}
s_nop 1
{test}
s_cbranch_scc0 {back}
s_sub_u32 s{sSpin}, s{sSpin}, 1
s_cbranch_scc0 {nm}
s_endpgm""")

    def dbg_check(self, cnt):
        self.spin("L_dbg", f"buffer_load_dword v239, off, {srd(SRD_DBG)}, 0 sc1", 239, f"s_and_b32 s{sPv}, s{sPv}, 15", "L_dbgok")
        return self.vwait(cnt, lambda x: "v239" in x.wr) + II(f"""v_readfirstlane_b32 s{sPv}, v239
s_nop 1
s_and_b32 s{sPv}, s{sPv}, 15
s_cbranch_scc1 L_dbg
L_dbgok:""")

    def die_check(self, cnt):
        return self.vwait(cnt, lambda x: "v218" in x.wr) + II(f"""v_cmp_ne_u32 s[{sFb}:{sFb + 1}], s{sXcc}, v218
s_nop 1
s_cmp_lg_u64 s[{sFb}:{sFb + 1}], {-1 if self.a.forcefb else 0}
s_cselect_b32 s{sPv}, {QSTR}, 0
s_cselect_b64 s[{sFb}:{sFb + 1}], -1, 0""")

    def init(self):
        a = self.a
        L = II(f"""s_cmp_ge_u32 s2, 256
s_cbranch_scc1 L_end
s_load_dwordx16 s[44:59], s[0:1], 0
s_load_dwordx4 s[60:63], s[0:1], 64
s_load_dwordx4 s[88:91], s[0:1], 80
s_load_dwordx2 s[64:65], s[0:1], 96
v_lshrrev_b32 v1, 6, v0
v_and_b32 v2, 63, v0
v_readfirstlane_b32 s3, v1
s_and_b32 s4, s2, 7
s_lshr_b32 s92, s2, 3
s_lshr_b32 s6, s4, 2
s_and_b32 s4, s4, 3
s_lshl_b32 s4, s4, 2
{'s_and_b32 s93, s92, 3' if a.map else 's_lshr_b32 s93, s92, 3'}
s_add_u32 s4, s4, s93
{'s_lshr_b32 s7, s92, 2' if a.map else 's_and_b32 s7, s92, 7'}
s_lshl_b32 s{sW4}, s3, 12
v_lshrrev_b32 v3, 5, v2
v_and_b32 v4, 31, v2
v_and_b32 v5, 1, v1
v_lshlrev_b32 v5, 3, v5
v_lshl_or_b32 v5, v3, 1, v5
v_xor_b32 v6, v4, v5
v_xor_b32 v7, 4, v6
v_lshl_add_u32 v8, v1, 3, v3
v_lshlrev_b32 v9, 13, v8
v_lshlrev_b32 v12, 2, v3
v_xor_b32 v12, v12, v4
v_xor_b32 v13, 8, v12
v_lshl_add_u32 v{oWq}, v12, 4, v9
v_lshl_add_u32 v{oWq + 1}, v13, 4, v9
s_mul_i32 s{sW8}, s3, 4104
v_add_u32 v{oWq + 1}, {2 * 8192 - 2048}, v{oWq + 1}
v_and_b32 v10, 15, v2
v_lshrrev_b32 v11, 4, v2
v_lshrrev_b32 v19, 2, v2
v_and_b32 v20, 3, v2
v_mul_u32_u24 v12, 48, v1
v_add_u32 v12, v12, v19
v_mul_u32_u24 v12, 896, v12
v_sub_u32 v13, 0, v11
v_xor_b32 v13, v13, v20
v_and_b32 v13, 3, v13
v_lshl_add_u32 v{vX}, v13, 4, v12
v_add_u32 v{vX + 1}, {16 * 896 - 1024}, v{vX}
v_add_u32 v{vX + 2}, {32 * 896 - 2048}, v{vX}
s_waitcnt lgkmcnt(0)
s_cmp_eq_u32 s6, 0
s_cselect_b64 s[{SRD_X}:{SRD_X + 1}], s[44:45], s[54:55]
s_cselect_b64 s[{SRD_K}:{SRD_K + 1}], s[46:47], s[56:57]
s_cselect_b64 s[{SRD_V}:{SRD_V + 1}], s[48:49], s[58:59]
s_cselect_b64 s[{SRD_WQ}:{SRD_WQ + 1}], s[50:51], s[60:61]
s_cselect_b64 s[{SRD_WO}:{SRD_WO + 1}], s[52:53], s[62:63]
s_mul_i32 s94, s7, 172032
s_add_u32 s{SRD_X}, s{SRD_X}, s94
s_addc_u32 s{SRD_X + 1}, s{SRD_X + 1}, 0
s_mov_b32 s{SRD_X + 2}, 172032
s_mov_b32 s{SRD_X + 3}, 0x20000
s_lshl_b32 s94, s4, 9
s_add_u32 s{SRD_WQ}, s{SRD_WQ}, s94
s_addc_u32 s{SRD_WQ + 1}, s{SRD_WQ + 1}, 0
s_mov_b32 s{SRD_WQ + 2}, {447 * 8192 + 512}
s_mov_b32 s{SRD_WQ + 3}, 0x20000""")
        L[2:2] = self.leak("s")
        if a.trace:
            L[2:2] = II("s_mov_b32 s96, 0\nv_mov_b32 v252, 0\nv_mov_b32 v253, 0") + self.trace()
        tcalc = II(f"""s_lshl_b32 s94, s7, 2
s_add_u32 s94, s94, s3
s_lshl_b32 s94, s94, 13
v_lshl_add_u32 v13, v19, 18, s94
v_lshl_add_u32 v13, v20, 7, v13
v_cmp_gt_u32 vcc, {4 * a.tb}, v2
v_mov_b32 v16, 0x40000000
s_and_b32 s94, s4, 3
s_lshl_b32 s94, s94, 2
v_cndmask_b32 v{vTw}, v16, v13, vcc
s_add_u32 s94, s94, s3
s_mul_i32 s94, s94, {12 * 896}
v_mul_u32_u24 v13, 43, v2
v_lshrrev_b32 v13, 9, v13
v_mul_u32_u24 v14, 12, v13
v_sub_u32 v14, v2, v14
v_mul_u32_u24 v14, 896, v14
v_lshl_add_u32 v13, v13, 7, v14
v_cmp_gt_u32 vcc, {6 * a.tb}, v2
v_add_u32 v13, s94, v13
s_nop 0
v_cndmask_b32 v{vTw + 1}, v16, v13, vcc""")
        kv = II(f"""s_lshl_b32 s94, s7, 4
s_add_u32 s94, s94, s4
s_lshl_b32 s95, s94, 19
s_add_u32 s{SRD_K}, s{SRD_K}, s95
s_addc_u32 s{SRD_K + 1}, s{SRD_K + 1}, 0
s_mov_b32 s{SRD_K + 2}, 0x80000
s_mov_b32 s{SRD_K + 3}, 0x20000
s_add_u32 s{SRD_V}, s{SRD_V}, s95
s_addc_u32 s{SRD_V + 1}, s{SRD_V + 1}, 0
s_mov_b32 s{SRD_V + 2}, 0x80000
s_mov_b32 s{SRD_V + 3}, 0x20000
s_mul_i32 s94, s2, {a.rmul}
s_lshr_b32 s94, s94, {a.rsh}
s_and_b32 s94, s94, 31
s_lshr_b32 s95, s94, {a.ws}
s_lshl_b32 s95, s95, {a.ws + 14}
s_and_b32 s{sK}, s94, {(1 << a.ws) - 1}
s_lshl_b32 s{sK}, s{sK}, 12
s_or_b32 s{sK}, s{sK}, s95
s_mov_b32 s{sV}, s{sK}
v_lshlrev_b32 v9, {10 if a.pg else 12 + a.ws}, v1
v_lshl_add_u32 v9, v3, 9, v9
v_lshl_add_u32 v{oV}, v6, 4, v9
v_lshl_add_u32 v{oV + 1}, v7, 4, v9
v_lshl_or_b32 v12, v1, 2, v3
v_xor_b32 v12, v4, v12
v_xor_b32 v13, 2, v12
v_lshl_add_u32 v{oK}, v12, 4, v9
v_lshl_add_u32 v{oK + 1}, v13, 4, v9
v_add_u32 v{oK + 1}, {6144 * a.pg}, v{oK + 1}
v_add_u32 v{oV + 1}, {6144 * a.pg}, v{oV + 1}
v_mul_u32_u24 v13, 3072, v1
v_lshl_add_u32 v{oSt}, v2, 4, v13""")
        rest = f"""s_lshl_b32 s95, s6, 3
s_add_u32 s95, s95, s7
s_mul_i32 s93, s95, {GSTR}
s_add_u32 s{SRD_GRP}, s64, s93
s_addc_u32 s{SRD_GRP + 1}, s65, 0
s_mov_b32 s{SRD_GRP + 2}, {GSTR}
s_mov_b32 s{SRD_GRP + 3}, 0x20000
s_mul_i32 s93, s95, {a.flagstride}
s_add_u32 s93, s93, {FLAGOFF}
s_add_u32 s{SRD_FLG}, s64, s93
s_addc_u32 s{SRD_FLG + 1}, s65, 0
s_mov_b32 s{SRD_FLG + 2}, 4096
s_mov_b32 s{SRD_FLG + 3}, 0x20000
s_getreg_b32 s{sXcc}, hwreg(HW_REG_XCC_ID, 0, 4)
s_lshl_b32 s{sMyF}, s4, {a.fsh}
s_lshr_b32 s93, s4, 2
s_lshl_b32 s{sIds}, s93, {a.fsh + 2}
s_add_u32 s{sIds}, s{sIds}, 4
s_mul_i32 s{sSt + 3}, s93, {QSTR}
s_mul_i32 s{sSt}, s93, {4 * QSTR}
s_lshl_b32 s93, s93, 7
s_lshl_b32 s94, s3, 2
s_add_u32 s93, s93, s94
s_add_u32 s93, s93, 2048
s_and_b32 s94, s4, 3
s_lshl_b32 s94, s94, 4
s_add_u32 s{sMyR}, s93, s94
s_xor_b32 s{sPrR}, s{sMyR}, 16
s_xor_b32 s{sPrR + 1}, s{sMyR}, 32
v_mov_b32 v{vL}, 0
v_mov_b32 v21, s{sXcc}
v_lshlrev_b32 v22, 12, v2
v_lshlrev_b32 v23, 12, v0
buffer_store_dword v{vL}, v23, {srd(SRD_FLG)}, s{sMyF} offen sc1
buffer_store_dword v21, v23, {srd(SRD_FLG)}, s{sMyF} offen offset:4 sc1
buffer_store_dword v{vL}, v22, {srd(SRD_FLG)}, s{sMyR} offen sc1
s_add_u32 s{sSt + 3}, s{sSt + 3}, {FBASE}
s_add_u32 s{sSt}, s{sSt}, {RBASE}
s_and_b32 s{sPc}, s4, 3
s_xor_b32 s{sPc + 1}, s{sPc}, 1
s_xor_b32 s{sPc + 2}, s{sPc}, 3
s_xor_b32 s{sPc + 3}, s{sPc}, 2
s_mul_i32 s{sD}, s4, {DSTR}
s_mov_b32 s{sSpin}, 0x40000
s_lshl_b32 s93, s95, 4
s_add_u32 s{SRD_DBG}, s90, s93
s_addc_u32 s{SRD_DBG + 1}, s91, 0
s_mov_b32 s{SRD_DBG + 2}, 4
s_mov_b32 s{SRD_DBG + 3}, 0x20000
s_mul_i32 s93, s7, {192 * 1792}
s_mul_i32 s94, s6, 896
s_add_u32 s93, s93, s94
s_add_u32 s{SRD_OUT}, s88, s93
s_addc_u32 s{SRD_OUT + 1}, s89, 0
s_mov_b32 s{SRD_OUT + 2}, {191 * 1792 + 896}
s_mov_b32 s{SRD_OUT + 3}, 0x20000
s_lshl_b32 s{sGw}, s3, 4
s_add_u32 s{sGw}, s{sGw}, s4
s_lshr_b32 s93, s4, 2
s_sub_u32 s93, s{sGw}, s93
s_cmp_eq_u32 s3, 3
s_cselect_b32 s{sGw}, s93, s{sGw}
s_and_b32 s93, s4, s3
s_add_u32 s94, s7, 60
s_cmp_eq_u32 s93, 3
s_cselect_b32 s{sGw}, s94, s{sGw}
s_sub_u32 s94, s{sGw}, 24
s_mul_i32 s93, s94, 5462
s_lshr_b32 s93, s93, 16
s_mul_i32 s93, s93, 36
s_add_u32 s94, s94, s93
s_add_u32 s93, s{sGw}, 144
s_cmp_lt_u32 s{sGw}, 24
s_cselect_b32 s93, s93, s94
s_cselect_b32 s94, s{sGw}, s94
s_cselect_b32 s95, 0, {FBASE}
s_mov_b32 s{sRq + 1}, {HC}
s_cselect_b32 s{sRq + 1}, {4 * DSTR}, s{sRq + 1}
s_mov_b32 s{sRb + 1}, {QSTR}
s_cselect_b32 s{sRb + 1}, {DSTR}, s{sRb + 1}
s_lshl_b32 s94, s94, 10
s_add_u32 s{sRb}, s94, s95
s_mov_b32 s{sRq}, 0
s_lshl_b32 s{sRq + 2}, s{sRq + 1}, 1
s_add_u32 s{sRq + 3}, s{sRq + 2}, s{sRq + 1}
s_mul_i32 s94, s93, 5462
s_lshr_b32 s94, s94, 16
s_mul_i32 s95, s94, 12
s_sub_u32 s95, s93, s95
s_mul_i32 s95, s95, {16 * 1792}
s_lshl_b32 s94, s94, 6
s_add_u32 s{sOo}, s94, s95
s_mul_i32 s95, s4, 229376
s_add_u32 s{SRD_WO}, s{SRD_WO}, s95
s_addc_u32 s{SRD_WO + 1}, s{SRD_WO + 1}, 0
s_sub_u32 s{SRD_WO}, s{SRD_WO}, 4096
s_subb_u32 s{SRD_WO + 1}, s{SRD_WO + 1}, 0
s_mov_b32 s{SRD_WO + 2}, {229376 + 4096}
s_mov_b32 s{SRD_WO + 3}, 0x20000
s_mov_b32 s{sC}, {f32(1.4426950408889634 / 16)}
v_lshl_add_u32 v13, v1, 6, v19
v_mul_u32_u24 v13, 896, v13
v_and_b32 v14, 1, v11
v_lshlrev_b32 v14, 1, v14
v_xor_b32 v15, v14, v20
v_lshl_add_u32 v13, v15, 4, v13
v_add_u32 v{oWo}, 4096, v13
v_add_u32 v{oWo + 1}, {4096 + 32 * 896 - 2048}, v13
v_lshrrev_b32 v15, 1, v20
v_or_b32 v15, v15, v14
v_lshlrev_b32 v15, 4, v15
v_lshl_add_u32 v15, v19, 6, v15
v_and_b32 v14, 1, v2
v_lshl_add_u32 v255, v14, 3, v15
v_lshrrev_b32 v13, 1, v10
v_and_b32 v14, 1, v10
v_lshl_add_u32 v13, v13, 2, v14
v_lshlrev_b32 v13, 9, v13
v_and_b32 v14, 1, v11
v_xor_b32 v15, v11, v10
v_lshl_add_u32 v13, v15, 4, v13
v_add_u32 v{aK}, {self.slot(F0) * 32768}, v13
v_xor_b32 v{aK + 1}, 64, v{aK}
v_xor_b32 v{aK + 2}, 128, v{aK}
v_xor_b32 v{aK + 3}, 192, v{aK}
v_bfe_u32 v13, v2, 3, 1
v_bfe_u32 v15, v2, 2, 1
v_lshlrev_b32 v16, 3, v11
v_lshl_add_u32 v16, v13, 2, v16
v_add_u32 v16, v16, v15
v_lshlrev_b32 v16, 9, v16
v_lshlrev_b32 v17, 3, v14
v_lshl_or_b32 v17, v13, 2, v17
v_lshl_or_b32 v17, v15, 1, v17
v_bfe_u32 v18, v2, 1, 1
v_or_b32 v17, v17, v18
v_lshl_add_u32 v16, v17, 4, v16
v_and_b32 v18, 1, v2
v_lshl_add_u32 v16, v18, 3, v16
v_add_u32 v{aV}, 0x10000, v16
v_mul_u32_u24 v16, 4104, v11
v_lshl_add_u32 v16, v13, 11, v16
v_lshl_add_u32 v16, v15, 9, v16
v_add_u32 v16, {self.slot(0) * 32768 + 16320}, v16
v_lshl_add_u32 v{aU[0]}, v10, 4, v16
v_xor_b32 v17, 4, v10
v_lshl_add_u32 v{aU[1]}, v17, 4, v16
v_xor_b32 v17, 8, v10
v_lshl_add_u32 v{aU[2]}, v17, 4, v16
v_xor_b32 v17, 12, v10
v_lshl_add_u32 v{aU[3]}, v17, 4, v16
v_lshrrev_b32 v13, 2, v10
v_sub_u32 v13, 0, v13
v_xor_b32 v13, v13, v11
v_and_b32 v13, 3, v13
v_lshlrev_b32 v13, 4, v13
v_lshl_add_u32 v13, v10, 6, v13
v_lshl_add_u32 v13, v1, 12, v13
v_add_u32 v{aX}, {self.slot(0) * 32768}, v13
v_mov_b32 v{vT}, 1"""
        rest = rest.split("\n")
        code = II(f"""s_getpc_b64 s[94:95]
L_pc:
s_lshl_b32 s93, s92, 2
s_add_u32 s93, s93, s3
s_lshl_b32 s93, s93, 9
v_lshl_add_u32 v13, v20, 7, s93
v_min_u32 v13, L_last-L_page0, v13
v_add_u32 v13, L_page0-L_pc, v13
v_mov_b32 v15, s95
v_add_co_u32 v14, vcc, s94, v13
s_nop 1
v_addc_co_u32 v15, vcc, 0, v15, vcc
global_load_dword v231, v[14:15], off""") if a.ctouch else []
        rest += [f"v_xor_b32 v{aV + i}, {32 * i}, v{aV}" for i in range(1, 8)]
        rest += f"""s_lshl_b32 s93, s7, 2
s_add_u32 s93, s93, s3
s_mul_i32 s93, s93, {56 * 128}
s_add_u32 s{sTo}, s93, 4096
s_lshl_b32 s93, s{sPc}, 2
s_add_u32 s93, s93, s3
s_mul_i32 s93, s93, {72 * 128}
s_add_u32 s{sTo + 1}, s93, s{sSt}
v_min_u32 v215, 55, v2
v_lshlrev_b32 v215, 7, v215
v_min_u32 v{vCp}, {35 * 128}, v215""".split("\n")
        T = self.trace if a.itrace else (lambda: [])
        late = kv + [I(x) for x in rest]
        if a.pre:
            soon = lambda x: x.kind == "valu" or x.mn == "s_getreg_b32"
            k = max(i for i, x in enumerate(L) if x.text == "s_waitcnt lgkmcnt(0)")
            L[k:k] = code + tcalc + [x for x in late if soon(x)]
            code, tcalc, late = [], [], [x for x in late if not soon(x)]
        L += T() + self.tokens(-1, self.qs[0]) + code + tcalc + self.tokens(-1, self.qs[1]) + T() + late + self.tokens(-1, self.qs[2]) + T()
        L += II("s_branch L_page0\n.p2align 12\nL_page0:")
        for x in L:
            self.cnt.see(x)
        return L

    def tokens(self, n, toks):
        L = []
        for t in toks:
            if t == "W":
                L += self.tokens(n, "Q" if self.nw & 1 else "XQ")
            elif t == "X":
                k = self.nx
                assert k + 1 <= max(n, 0) + 4
                L += II(f"s_mov_b32 s{sT2}, {k * 64}\ns_mov_b32 s{sX2}, {k * 64 + 64}")
                for qb in range(3):
                    for m, so in ((k, sT2), (k + 1, sX2)):
                        L += [I(self.fill_halves(m)[0][0]), self.dma(m, vX + qb, SRD_X, so, qb * 1024, self.a.wfl)]
                self.nx += 2
            elif t == "Q":
                assert self.nw <= max(n, 0) + 4
                m0, pre, d = self.fill_halves(self.nw)[1]
                L += [I(m0)] + pre + d
                self.nw += 1
            elif t == "T":
                k0 = self.a.t0 + self.nt * self.a.tb
                L += II(f"""s_mov_b32 s{sT0}, {k0 * 262144}
s_mov_b32 s{sT1}, {k0 // 2 * 128}
buffer_load_dword v231, v{vTw}, {srd(SRD_WQ)}, s{sT0} offen {self.a.tfl}
buffer_load_dword v231, v{vTw + 1}, {srd(SRD_X)}, s{sT1} offen {self.a.tfl}""")
                self.nt += 1
            elif t == "K":
                L += II(f"buffer_load_dword v231, off, {srd(SRD_K)}, s{sK} nt\nbuffer_load_dword v231, off, {srd(SRD_V)}, s{sV} nt")
            elif t == "O":
                L += II(f"buffer_load_dword v214, v215, {srd(SRD_WO)}, s{sTo} offen")
            elif t == "R":
                L += II(f"buffer_load_dword v214, v{vCp}, {srd(SRD_GRP)}, s{sTo + 1} offen\ns_add_u32 s{sTo + 1}, s{sTo + 1}, {36 * 128}")
            elif t == "H":
                L += self.halves(n, self.nh + 1)
        return L

    def qproj(self, tl):
        a = self.a
        nj = NW - 1 - a.joint
        for n in range(nj + 1):
            ks_ = [n] if n < nj else list(range(n, NW))
            frags = [self.ufrag(k - n, db, lambda qb, db=db: R("v", QA(db, qb), 4), lambda qb, k=k: R("v", XB(k, qb), 4), czero=(k == 0))
                     for db in range(16) for k in ks_]
            for i, k in enumerate(ks_):
                assert self.slot(k) == self.slot(n) + i
                frags[i]["pre"] = [f"ds_read_b128 {R('v', XB(k, qb), 4)}, v{aX} offset:{i * 32768 + qb * 1024}" for qb in range(3)]
                frags[i]["late"] = i > 0
            self.qlast = frags[len(ks_) - 1::len(ks_)]
            frags = [f for _, f in sorted(enumerate(frags), key=lambda t: t[0] + 5.5 * (t[0] % len(ks_)))]
            toks = "".join(self.qs[3 + k] for k in ks_)
            extra = self.tokens(n, toks)
            if n == 11:
                extra += II(f"buffer_atomic_add v{vT}, v{oSt}, {srd(SRD_DBG)}, 0 offen sc1")
            dwin = (0.1 * toks.count("."), 0.92 - 0.1 * toks.count(","))
            seg = self.segment(tl, n, frags, upd="XU" if n < nj else "", extra=extra, dwin=dwin, upto_fill=ks_[-1])
            if n == 11:
                self.ones = tl.spread("z", II(f"""v_and_b32 v{vOne}, 0xf0, v{oSt}
v_cmp_eq_u32 vcc, 0, v{vOne}
v_mov_b32 v{vOne + 1}, 0x3f803f80
s_nop 0
v_cndmask_b32 v{vOne}, 0, v{vOne + 1}, vcc
v_mov_b32 v{vOne + 1}, v{vOne}
v_mov_b32 v{vOne + 2}, v{vOne}
v_mov_b32 v{vOne + 3}, v{vOne}"""), seg["p0"] + 2, seg["end"], deps=[seg["bar"]])[-1]
                assert self.nx == NW
            if n == 7:
                assert self.X % 2 == 0
                tl.spread("z", [f"v_accvgpr_write_b32 a{i}, 0" for i in range(O(16 - self.X // 2, 0), 192)], seg["p0"], seg["end"] - 9)

    def qconv(self, tl):
        last = {}
        for ks in range(8):
            L = []
            for qb in range(3):
                s, d = QA(2 * ks, qb), QB(ks, qb)
                L += [f"v_mul_f32 v{s + i}, s{sC}, v{s + i}" for i in range(8)]
                L += [f"v_cvt_pk_bf16_f32 v{d + i}, v{s + 2 * i}, v{s + 2 * i + 1}" for i in range(4)]
            f = self.qlast[2 * ks + 1]
            for x in L:
                last[ks] = tl.add("cv", x, f["pos"] + 6, deps=[f["m"][-1]])
        return last

    def first(self, tl):
        fr = [self.kfrag(F0, 0, 0, j, ks, czero=True) for ks in range(8) for j in range(2)]
        fr += [self.kfrag(F0, 1, 1, j, ks) for j in range(2) for ks in range(8)]

        def h0(tl, seg):
            cv = self.qconv(tl)
            for i in range(16):
                fr[i]["needs"] = [[cv[max(i >> 1, 1)]]] * 3
            return []

        def h16(tl, seg):
            m, mx = self.tilemax((0,))
            m += [f"v_add_f32 v{r}, {f32(self.a.tref)}, v{r}" for r in mx]
            m += [f"v_sub_f32 v{vNm + qb * 4 + r}, 0, v{mx[qb]}" for qb in range(3) for r in range(4)]
            nm = tl.spread("sm", m, tl.pos(), tl.pos(), deps=[fr[15]["m"][-1]])[-1]
            tl.spread("sm", [f"v_sub_f32 v{S(0, j, qb) + r}, v{S(0, j, qb) + r}, v{mx[qb]}" for j in range(2) for qb in range(3) for r in range(4)], tl.pos(), tl.pos())
            return [nm]
        seg = self.segment(tl, F0, fr, hooks={0: h0, 16: h16}, upto=self.upto(0), dwin=(0.0, 0.9), notail=True)
        self.put_softmax(tl, seg["p1"])
        return seg

    def final(self, tl):
        a = self.a
        ls = [vL + qb for qb in range(3)]
        lfin = [f"v_mov_b32 v{vL + qb}, v{LA[qb]}" for qb in range(3)] + self.xlane(ls, "v_add_f32") + [f"v_rcp_f32 v{r}, v{r}" for r in ls]

        def h2(tl, seg):
            self.linv = tl.spread("sm", lfin, tl.pos() + 3, tl.pos() + 16, deps=[self.pvf[1]["mm"][-1]])[-1]
            return []
        fix = [Lazy(self.die_check)] + II(f"""s_add_u32 s{sSt}, s{sSt}, s{sPv}
s_add_u32 s{sSt + 1}, s{sSt}, s{sPv}
s_add_u32 s{sSt + 2}, s{sSt + 1}, s{sPv}
v_add_u32 v{aW}, {self.slot(WO0) * 32768}, v255
v_xor_b32 v{aW + 1}, 32, v{aW}""")
        self.seg_pv(tl, 31, False, hooks={2: h2}, extra=self.tail_tokens(FL), first=fix, dwin=self.tail_win(FL))
        pv = self.pvf[1::2]
        st = {}

        def oconv(tl, seg):
            for ks in range(8):
                f = pv[2 * ks + 1]
                for qb in range(3):
                    t = vE + 8 * ((ks * 3 + qb) & 1)
                    L = [f"v_accvgpr_read_b32 v{t + 4 * b + r}, a{O(2 * ks + b, qb) + r}" for b in range(2) for r in range(4)]
                    L += [f"v_cvt_pk_bf16_f32 v{QB(ks, qb) + i}, v{t + 2 * i}, v{t + 2 * i + 1}" for i in range(4)]
                    for x in L:
                        st[ks, qb] = tl.add("cv", x, f["pos"] + 6, deps=[f["m"][-1], self.ladd])
                        st[ks, qb].over = False
            self.cvdone = st[7, 2]

        slots = []
        for nc in range(7):
            order = [(hs, db) for hs in range(2) for db in range(16)]
            if a.gw:
                order = [(hs, 2 * ks + nb) for hs in range(2) for nb in range(2) for ks in range(8)]
            if nc == 0:
                order = [(hs, 2 * ks + nb) for ks in range(8) for hs in range(2) for nb in range(2)]
            frags = [self.wfrag(hs, db, lambda qb, t=2 * nc + hs, db=db: R("v", ACC(t, qb, db & 1), 4),
                                lambda qb, db=db: R("v", QB(db >> 1, qb), 4), czero=(db < 2)) for hs, db in order]
            hooks = {}
            if nc and a.gw:
                for (hs, db), f in zip(order, frags):
                    f["key"], f["size"] = (hs, db & 1), a.gw
            if nc == 0:
                def h0(tl, seg):
                    oconv(tl, seg)
                    for (hs, db), f in zip(order, frags):
                        f["needs"] = [[st[db >> 1, qb]] for qb in range(3)]
                    return []
                hooks = {0: h0}
            slots += [[f for (hs, db), f in zip(order, frags) if hs == h] for h in range(2)]
            pre, also = [], None
            if nc == 0:
                pre = [Lazy(lambda cnt: II(f"s_cmp_lg_u32 s{sFb}, 0\ns_cbranch_scc1 L_far\nL_near:"))] + II(f"v_mov_b32 v{vT}, 1\nv_lshrrev_b32 v{vT + 1}, {12 - a.fsh}, v{vLn}\nv_and_b32 v{vT + 1}, {15 << a.fsh}, v{vT + 1}")
                pre[1].deps = [self.ladd]
            if nc == 1:
                pre = II(f"""v_bfe_u32 v249, v{vLn}, 12, 4
v_lshrrev_b32 v250, 16, v{vLn}
v_mul_lo_u32 v248, s{sRb + 1}, v250
v_lshl_add_u32 v248, v249, 4, v248
v_add_u32 v248, s{sRb}, v248""")
            if nc == a.dflag:
                pre = II(f"buffer_store_dword v{vT}, v{vTd}, {srd(SRD_FLG)}, s{sMyF} offen sc1")
                also = lambda x: x.tag and x.tag[0] == "st" and a.ring[x.tag[1]] == "D"
            seg = self.segment(tl, WO0 + nc, frags, hooks=hooks, upd="W", last=(nc == 6), dwin=self.tail_win(WO0 + nc), first=pre,
                               extra=self.tail_tokens(WO0 + nc), also=also)
            if nc == a.dflag:
                dbar = seg["bar"]
        end = tl.pos()
        P0 = end - 14 * 48

        def either(text, tag=None, fl=""):
            x = I(text + fl, tag=tag)
            x.alt = text + " sc1"
            return x
        ring = [t for t in range(14) if a.ring[t] != "D"]
        eorder = list(range(14))
        if a.ring[0] == "D" and a.ring[1] != "D":
            eorder[:2] = [1, 0]
        rg, pub, ep_last, free, latest, stores = [], {}, {}, P0 + 96 + 3, [0], {}
        for t in eorder:
            step, k = self.role(t)
            add = step is not None and step > 0
            lo = max(P0 + 48 * (t + 1) + 3, free)
            ln = a.elen if add else a.elen0
            loads = []
            if add:
                r = ring.index(t)
                poll = f"buffer_load_dword v{vPoll}, off, {srd(SRD_FLG)}, s{sPrR + (step == 2)} sc1"

                def check(cnt, r=r, poll=poll):
                    self.spin(f"L_rs{r}", poll, vPoll, f"s_cmp_lt_u32 s{sPv}, {r - 2}", f"L_rb{r}")
                    return self.vwait(cnt, lambda x: f"v{vPoll}" in x.wr) + II(f"""v_readfirstlane_b32 s{sPv}, v{vPoll}
s_nop 0
s_cmp_lt_u32 s{sPv}, {r - 2}
s_cbranch_scc1 L_rs{r}
L_rb{r}:""")
                loads = [I(f"buffer_load_dwordx4 {R('v', IN(r, qb), 4)}, v{oSt}, {srd(SRD_GRP)}, s{sLo} offen offset:{qb * 1024} sc1" + " nt" * (step >= a.ntld)) for qb in range(3)]
                dep = [pub[r - 3], ep_last[ring[r - 3]], self.linv, self.cvdone]
                pl, ck = I(poll), Lazy(check)
                pl.after, ck.after = [(pub[r - 3], a.pmin)], [(pl, a.cmin)]
                early = latest[0] = max(pub[r - 3].when + a.pmin, latest[0])
                late = max(early, lo - a.lmin - a.cmin)
                tp = early + (late - early) * (a.pf if r < 11 else a.pfl)
                tc = tp + a.cmin + (late - tp) * a.cf
                latest[0] = tc + 7
                rg += [(tp, pl, [pub[r - 3]])]
                if a.hold and a.ring[t - 2] in "3D":
                    for x in stores[t - 2]:
                        x.deps.append(loads[-1] if a.hold == 2 else pl)
                if a.hold == 3 and a.ring[t - 1] in "3D":
                    for x in stores[t - 1]:
                        x.deps.append(loads[-1])
                rg += [(tc - 4 + i, x, []) for i, x in enumerate(self.col(t, sLo, 192, sSt + step - 1))]
                rg += [(tc, ck, dep)] + [(tc + 1 + 2 * qb, loads[qb], []) for qb in range(3)]
            pre = [I(f"s_add_u32 s{sSt0}, s{sD}, {k * HC}")] if step is None else self.col(t, sSt0, 192, sSt + step)
            tl.spread("st", pre, min(lo, end), min(lo + 4, end))
            L, marks = [], []
            for qb in range(3):
                b = ACC(t, qb, 0)
                if add:
                    w = Lazy(lambda cnt, r=IN(r, qb): self.vwait(cnt, lambda x: f"v{r}" in x.wr))
                    w.deps, w.vec_cost = [loads[qb]], 0
                    L.append(w)
                    for i in range(4):
                        x, u = IN(r, qb) + i, vU + (i & 1)
                        L += II(f"""v_lshlrev_b32 v{u}, 16, v{x}
v_and_b32 v{x}, 0xffff0000, v{x}
v_fma_f32 v{b + 2 * i}, v{b + 2 * i}, v{vL + qb}, v{u}
v_fma_f32 v{b + 2 * i + 1}, v{b + 2 * i + 1}, v{vL + qb}, v{x}""")
                else:
                    L += [I(f"v_mul_f32 v{b + i}, v{vL + qb}, v{b + i}") for i in range(8)]
                L += [I(f"v_cvt_pk_bf16_f32 v{b + i}, v{b + 2 * i}, v{b + 2 * i + 1}") for i in range(4)]
                marks.append(L[-1])
            tl.spread("ep", L, min(lo, end + 0.1), min(lo + ln, end + (0.9 if lo > end else 0)), deps=[slots[max(t, 1)][-1]["m"][-1], self.linv])
            for qb in range(3):
                txt = f"buffer_store_dwordx4 {R('v', ACC(t, qb, 0), 4)}, v{oSt}, {srd(SRD_GRP)}, s{sSt0} offen offset:{qb * 1024}"
                L.append(either(txt, ("st", t), " nt" * (step >= a.ntstep)) if step in (0, 1, 2) else I(txt + " " + a.stfl, tag=("st", t)))
                tl.add("st", L[-1], marks[qb].target + 0.001, deps=[marks[qb]])
            free = lo + ln
            stores[t] = L[-3:]
            ep_last[t] = marks[-1]
            if step is None and a.dflag < 7:
                dbar.deps.append(L[-1])
            if t + 4 < 14:
                for m in slots[t + 4][0]["m"]:
                    m.needs.append(L[-1])
            if step in (0, 1, 2):
                r = ring.index(t)
                fdel = a.fdel if step else a.fdel0
                when = lo + ln + fdel
                fs = either(f"buffer_store_dword v{vFlag}, v{vLn}, {srd(SRD_FLG)}, s{sMyR} offen")
                fs.when = when
                pub[r] = fs
                w = Lazy(lambda cnt, t=t: self.vwait(cnt, lambda x: x.tag == ("st", t)))
                w.after = [(L[-1], fdel)]
                for x, dep in ((I(f"v_mov_b32 v{vFlag}, {r + 1}"), []), (w, [L[-1]]), (fs, [])):
                    tl.add("fl", x, when - 1, deps=dep)
        rg += [(latest[0] + 1, I(f"buffer_load_dword v{vT + 2}, v{vT + 1}, {srd(SRD_FLG)}, 0 offen sc1"), [dbar])]
        for when, x, dep in sorted(rg, key=lambda y: y[0]):
            tl.add("rg", x, when, deps=dep)

    def reduce(self):
        a = self.a
        RB = lambda q, u: q * 16 + u * 4
        AC = lambda q, d: q * 8 + d * 4
        lds = lambda fl: [I(f"buffer_load_dwordx4 {R('a', RB(q, u), 4)}, v248, {srd(SRD_GRP)}, s{sRq + q} offen offset:{u * 256} {fl}") for q in range(4) for u in range(4)]
        pack = lambda q: [I(f"v_cvt_pk_bf16_f32 v{AC(q, 0) + k}, v{AC(q, 0) + 2 * k}, v{AC(q, 0) + 2 * k + 1}") for k in range(4)]
        mf = lambda q, u, acc, z: I(f"{MF} {R('v', AC(acc, u & 1), 4)}, {R('v', 220 + 4 * (u >> 1), 4)}, {R('a', RB(q, u), 4)}, " + ("0" if z and u < 2 else R("v", AC(acc, u & 1), 4)))

        def selectors():
            Z = II("""v_and_b32 v238, 1, v249
v_lshlrev_b32 v238, 4, v238
v_mov_b32 v239, 0x3f80
v_lshlrev_b32 v238, v238, v239
v_lshrrev_b32 v237, 1, v249""")
            for which in range(2):
                for d in range(4):
                    code = (d & 1) | (which << 1) | ((d >> 1) << 2)
                    Z += II(f"v_cmp_eq_u32 vcc, {code}, v237\nv_cndmask_b32 v{220 + 4 * which + d}, 0, v238, vcc")
            return Z
        publish = lambda n: II(f"""s_waitcnt vmcnt({n})
s_barrier
buffer_store_dword v{vFlag}, v{vTd}, {srd(SRD_FLG)}, s{sMyF} offen sc1""") + self.trace()
        poll = lambda nm, lv, go: II(f"""{nm}:
buffer_load_dword v{vT + 2}, v{vT + 1}, {srd(SRD_FLG)}, 0 offen sc1
s_waitcnt vmcnt(0)
v_cmp_gt_u32 vcc, {lv}, v{vT + 2}
s_nop 1
s_cbranch_vccz {go}
s_sleep {a.fsleep}
s_sub_u32 s{sSpin}, s{sSpin}, 1
s_cbranch_scc0 {nm}
s_endpgm""")
        L = II(f"""v_mov_b32 v{vFlag}, 2
s_cmp_lt_u32 s{sGw}, 24
s_cbranch_scc1 L_direct
v_mul_u32_u24 v231, 1792, v250
v_lshl_add_u32 v231, v249, 4, v231
v_add_u32 v233, s{sOo}, v231
v_mul_u32_u24 v229, 272, v249
v_lshl_add_u32 v229, v250, 4, v229
s_lshl_b32 s92, s{sW4}, 1
v_add_u32 v229, s92, v229
v_mul_u32_u24 v230, 272, v250
v_lshl_add_u32 v230, v249, 4, v230
v_add_u32 v230, s92, v230""") + selectors() + publish(0) + II(f"""s_cmp_ge_u32 s{sGw}, 60
s_cbranch_scc1 L_done""") + poll("L_poll", 2, "L_go") + [I("L_go:")] + (self.trace() if a.gtrace else []) + lds(a.rdfl)
        put = lambda q: pack(q) + [I(f"ds_write_b128 v229, {R('v', AC(q, 0), 4)} offset:{q * 64}")]
        for q in range(4):
            L += [I(f"s_waitcnt vmcnt({12 - 4 * q})")] + [mf(q, u, q, True) for u in range(4)]
            if q:
                L += put(q - 1)
        L += put(3) + [I(f"ds_read_b128 {R('v', 32 + 4 * q, 4)}, v230 offset:{q * 4 * 272}") for q in range(4)]
        for q in range(4):
            L += II(f"s_mov_b32 s92, {q * 4 * 1792}\ns_waitcnt lgkmcnt({3 - q})\nbuffer_store_dwordx4 {R('v', 32 + 4 * q, 4)}, v233, {srd(SRD_OUT)}, s92 offen {a.outfl}")
        L += [I("L_done:")]
        D = II(f"""L_direct:
v_mul_u32_u24 v231, 1792, v249
v_lshl_add_u32 v231, v250, 4, v231""") + selectors() + publish(0) + II(f"""v_cmp_gt_u32 vcc, 1, v{vT + 2}
s_nop 1
s_cbranch_vccnz L_dpoll
L_dgo:""") + (self.trace() if a.gtrace else []) + lds(a.ddfl)
        for q in range(4):
            D += [I(f"s_waitcnt vmcnt({12 - 4 * q})")] + [mf(q, u, 0, q == 0) for u in range(4)]
        D += pack(0) + II(f"buffer_store_dwordx4 v[0:3], v231, {srd(SRD_OUT)}, s{sOo} offen {a.outfl}\ns_branch L_done") + poll("L_dpoll", 1, "L_dgo")
        assert a.dflag < 6
        return L, D + self.ool

    def pack_muls(self, code):
        out, since, i = [], 99, 0
        while i < len(code):
            x = code[i]
            m = re.match(rf"v_mul_f32 v(\d+), s{sC}, ", x.text)
            if m and since >= 5 and int(m.group(1)) % 2 == 0 and code[i + 1].text.startswith(f"v_mul_f32 v{int(m.group(1)) + 1}, s{sC}, ") \
                    and not any(y.kind == "mfma" for y in code[i + 2:i + 5]):
                r = R("v", int(m.group(1)), 2)
                out.append(I(f"v_pk_mul_f32 {r}, {r}, s[{sC - 1}:{sC}] op_sel:[0,1] op_sel_hi:[1,1]"))
                i += 2
                since += 1
                continue
            since = 0 if x.kind == "mfma" else since + x.vec_cost
            out.append(x)
            i += 1
        return out

    def main_kernel(self):
        a = self.a
        pre = self.init()
        tl = Timeline(self.cnt)
        self.qproj(tl)
        self.first(tl)
        seg = self.seg_pv(tl, 1, False)
        u = len(self.sched)
        for v in range(2, u, 2):
            self.seg_qk(tl, v, False)
            seg = self.seg_pv(tl, v + 1, False)
        trips = (30 - u) // 4
        assert u + 4 * trips == 30
        assert self.nh == 2 * u + a.lead, self.nh
        ini = [f"s_mov_b32 s{sCnt}, {trips}"]
        tl.spread("dma", ini, seg["end"] - 6, seg["end"] - 1)
        pre += tl.run(a.look, a.pull, a.bias)
        if a.pk:
            pre = self.pack_muls(pre)
        pre += self.hop("L")
        if a.trace == 2:
            pre += [I("s_waitcnt lgkmcnt(0)")] + self.trace()
        tl = Timeline(self.cnt)
        for v in (u, u + 2):
            self.seg_qk(tl, v, True)
            self.seg_pv(tl, v + 1, True)
        tl.spread("dma", [f"s_sub_u32 s{sCnt}, s{sCnt}, 1", f"s_cmp_lg_u32 s{sCnt}, 0"], tl.pos() - 3, tl.pos() - 1)
        code = [I(".p2align 6"), I("L_loop:")] + tl.run(a.look, a.pull, a.bias) + [I("s_cbranch_scc1 L_loop")]
        loops = [dict(code=code, count=trips, step=4)]
        shift = 4 * (trips - 1)
        self.nh += 2 * shift
        self.cnt.vm = [I(x.text, tag=x.tag and (x.tag[0], x.tag[1] + shift)) for x in self.cnt.vm]
        tl = Timeline(self.cnt)
        self.seg_qk(tl, 30, False)
        self.final(tl)
        post = tl.run(a.look, a.pull, a.bias, vlate=a.vlate) + self.trace()
        post += [I("L_join:")] + self.leak("j")
        red, some = self.reduce()
        post += red
        if a.trace:
            post += self.trace() + [I("s_waitcnt vmcnt(0)")] + self.trace()
            post += II(f"""s_add_u32 s48, s64, 0xc800000
s_addc_u32 s49, s65, 0
s_mov_b32 s50, 0x80000
s_mov_b32 s51, 0x20000
s_lshl_b32 s3, s2, 11
s_lshr_b32 s4, s{sW4}, 3
s_add_u32 s3, s3, s4
s_getreg_b32 s5, hwreg(HW_REG_XCC_ID)
v_writelane_b32 v252, s5, 63
v_lshrrev_b32 v235, 10, v{vLn}
buffer_store_dword v252, v235, s[48:51], s3 offen
buffer_store_dword v253, v235, s[48:51], s3 offen offset:256""")
        if a.leak:
            post += [I("s_waitcnt vmcnt(0)")] + self.leak("e") + II(f"""{"s_mov_b32 s96, 1" if a.leak[0] == "c" else "s_sub_u32 s96, s100, s98"}
s_mul_i32 s96, s96, {a.leak.split(",")[2]}
s_min_u32 s96, s96, 0x100000
s_memrealtime s[98:99]
s_waitcnt lgkmcnt(0)
L_leak:
s_memrealtime s[100:101]
s_waitcnt lgkmcnt(0)
s_sub_u32 s100, s100, s98
s_cmp_lt_u32 s100, s96
s_cbranch_scc1 L_leak""")
        post += [I("L_end:"), I("s_endpgm")]
        blocks = [dict(code=pre)] + loops + [dict(code=post)]
        nn = fix_hazards(blocks)
        verify_waits(blocks)
        body = sum((b["code"] for b in loops), [])
        fix_hazards([dict(code=some)])
        k0 = next(i for i, x in enumerate(post) if x.text == "L_near:")
        k1 = next(i for i, x in enumerate(post) if x.text == "L_join:")
        ren = lambda t: re.sub(r"L_r([sb])(\d+)", r"L_f\1\2", t)
        far = [I("L_far:")] + [I(ren(getattr(x, "alt", x.text))) for x in post[k0 + 1:k1]] + [I("s_branch L_join")]
        k2 = next(i for i, x in enumerate(some) if x.text.startswith("L_rs"))
        far += [I(ren(x.text)) for x in some[k2:]]
        slow = []
        for k, p in enumerate(self.slow_sites):
            slow += [I(f"L_slow{k}:"), I(f"s_call_b64 s[{sRet}:{sRet + 1}], L_rescale{p}"), I(f"s_branch L_back{k}")]
        for p in sorted(set(self.slow_sites)):
            r = self.slow_routine(p)
            fix_hazards([dict(code=r)])
            slow += r
        if a.v:
            print("nops", nn, "trips", trips, "stamps", sum(x.text.startswith("s_memtime") for x in pre + post), "body", stats(body))
            for nm, code in (("pre", pre), ("post", post)):
                segs, cur = [], []
                for x in code:
                    if x.kind == "bar":
                        segs.append(cur)
                        cur = []
                    cur.append(x)
                segs.append(cur)
                print(nm, "est cycles per segment:", [stats(s)[0] for s in segs])
        if a.pad:
            pre += [I("s_branch L_padded")] + [I("s_nop 0")] * (a.pad // 4) + [I("L_padded:")]
        if a.odrop:
            k0 = next(i for i, x in enumerate(post) if x.kind == "bar" and x.tag and x.tag[1] == WO0)
            k1 = next(i for i, x in enumerate(post) if x.text.startswith("L_join"))
            post = post[:k0] + [x for x in post[k0:k1] if not any(x.text.startswith(d) for d in a.odrop.split(","))] + post[k1:]
        if a.ldrop:
            body = [x for x in body if not any(x.text.startswith(d) for d in a.ldrop.split(","))]
        return self.place_pads(pre + body + post + some + [I("L_last:")] + far + slow)


def text(code, drop=()):
    code = [x for x in code if not any(x.text.startswith(d) for d in drop)]
    return "".join(("" if x.kind == "label" else "    ") + x.text.rstrip() + "\n" for x in code)


HEADER = """;
; LDS holds five 32-KB slots filled by LDS-DMA with the bank swizzle on the source addresses.
;   1. Q^T = Wq^T x^T, scaled by log2(e)/16 and rounded to bf16 (stays in VGPRs as B operands).
;   2. Flash attention over pairs of 32-key tiles, a {K, K} slot then a {V, V} slot. The row reference
;      starts as the true max of tile 0 plus 36 and enters QK as the C operand; a pair with a probability of 2
;      or more branches to L_rescale0, which moves it to the true running max. Row sums come from an MFMA.
; Flags live in d_ws, are cleared at entry, and are trusted only after the group's d_debug counter is full.
; L_pad*: first line of each 4-KB code page, visited early with EXEC = 0 to warm the instruction cache.
"""


def build(a):
    g = Gen(a)
    nm = NAME + "_kernel"
    s = "".join(l for l in open(f"cdna_kernels/{NAME}.s.ref") if l.startswith(";   offset") or l.startswith("; Kernarg"))
    s += "; @launch grid=(256,1,1) block=(256,1,1) lds=163840\n"
    s += HEADER
    s += '.amdgcn_target "amdgcn-amd-amdhsa--gfx950"\n.text\n'
    s += f".globl {nm}\n.p2align 12\n.p2align 8\n.type {nm},@function\n{nm}:\n" + text(g.main_kernel(), a.drop.split(",") if a.drop else ())
    s += f""".section .rodata,"a"
.p2align 6
.amdhsa_kernel {nm}
  .amdhsa_next_free_vgpr 512
  .amdhsa_next_free_sgpr 102
  .amdhsa_accum_offset 256
  .amdhsa_group_segment_fixed_size 0
  .amdhsa_kernarg_size 104
  .amdhsa_user_sgpr_count 2
  .amdhsa_user_sgpr_kernarg_segment_ptr 1
  .amdhsa_system_sgpr_workgroup_id_x 1
.end_amdhsa_kernel
"""
    return s


def parser():
    ap = argparse.ArgumentParser()
    ap.add_argument("-o", default="k.s")
    ap.add_argument("-v", action="store_true")
    for k, v in dict(rmul=0, rsh=3, X=4, Y=3, cut=7, look=10, nq=5, tb=4, t0=2, lead=3, wofast=4, wotouch=30,
                     ws=0, grp=16, ctouch=1, trace=0, itrace=0, i0=2, flagstride=4352, pollsleep=2, hold=3, dip=-1, dipn=14, pre=1, fsh=5, minlead=0, pg=0, smlag=4, rlead=16, both=9, gtrace=0, fsleep=2, ntld=4, ntstep=3, joint=1, early=0, pk=1, kmaj=0, gk=8, gv=2, gf=2, gw=4, krot=1, lastbar=5, pad=0, map=0, sprint=0, slead=3, ltouch=0, dflag=4, elen=47, elen0=28, fdel=16, fdel0=34, lmin=30, forcefb=0, vlate=3, pmin=14, cmin=18).items():
        ap.add_argument("--" + k, type=int, default=v)
    for k, v in dict(tref=36.0, dmaspan=0.95, pull=3.0, bias=0.0, pf=1.0, pfl=0.3, cf=0.0, dmalo=0.14, slo=0.0, vend=0.36, vbeg=0.22, wend=0.26, wbeg=0.12).items():
        ap.add_argument("--" + k, type=float, default=v)
    for k, v in dict(kvfl="nt", wfl="", stfl="sc1", rdfl="sc1", ddfl="sc1", outfl="nt", drop="", ldrop="", odrop="", prof="", tfl="", leak="", wo29="", hops="3,L", hopn="5,16", ring="DD000111222333", wos="O|...PP|PP,,,RR||PP|P", sched="2,2",
                     qs="WW||T||......WW|WWT||...W|WW|WT||...W|WW|WH|H||H").items():
        ap.add_argument("--" + k, default=v)
    return ap


if __name__ == "__main__":
    a = parser().parse_args()
    txt = build(a)
    open(a.o, "w").write(txt)
```

```python
import argparse, re, struct
from asmlib import *

NAME = "concat_heads__mha_block_cached__gqa_block_cached__near_ridge"
f32 = lambda x: hex(struct.unpack("<I", struct.pack("<f", x))[0])

SRD_X, SRD_WQ, SRD_K, SRD_V, SRD_WO = 8, 12, 16, 20, 24
SRD_GRP, SRD_FLG, SRD_DBG, SRD_OUT = 68, 72, 80, 84
sMyR, sPrR, sMyF, sIds, sTo = 28, 60, 30, 31, 44
sPc, sSt, sD, sFb, sLo, sPv, sXcc, sSpin = 52, 56, 63, 76, 78, 79, 97, 67
sW4, sK, sV, sT0, sT1, sCur, sPrev, sDelta, sPos, sNeg, sCnt, sC = 32, 33, 34, 35, 36, 37, 38, 39, 40, 41, 42, 43
sSt0, sT2, sRet, sGw, sX2 = 4, 5, 6, 66, 29
sRq, sRb, sOo, sW8, sJ = 88, 46, 62, 37, 38
aK, aV, oK, oV, oWq, oWo, oSt = 192, 196, 204, 206, 208, 210, 212
vL, vT, aX, vE, vX, vTmp, vNm = 213, 216, 219, 220, 228, 232, 240
FRAG0 = 192
vCp = 254
aW = 194
LA, vOne = (168, 172, 176), 228
aU = (217, 218, 234, 235)
vTw = 232
MF = "v_mfma_f32_16x16x32_bf16"
srd = lambda s: f"s[{s}:{s + 3}]"
S = lambda p, j, qb: 24 + p * 48 + (j * 3 + qb) * 4
P = lambda p, qb: 120 + p * 12 + qb * 4
O = lambda db, qb: (db * 3 + qb) * 4
QA = lambda db, qb: ((db >> 1) * 3 + qb) * 8 + (db & 1) * 4
QB = lambda ks, qb: 48 * (ks >> 1) + 12 * (ks & 1) + 4 * qb
XB = lambda ks, qb: (220, 224, 236, 240, 244, 248)[(ks & 1) * 3 + qb]
ACC = lambda t, qb, nb: 24 + 48 * (t & 3) + qb * 8 + nb * 4
IN = lambda r, qb: (220, 232, 196)[r % 3] + 4 * qb
vLn, vTd, vPoll, vFlag, vU = 208, 209, 244, 245, 246
NW, F0, FL, WO0, NEND = 14, 14, 45, 46, 52
HC = 12288
DSTR, QSTR, FBASE, RBASE, GSTR = 7 * 4096, 37 * 4096, 0x70000, 0x110000, 865 * 4096
FLAGOFF = 16 * GSTR


def II(txt):
    return [I(x) for x in txt.strip().split("\n")]


class Gen:
    def __init__(self, a):
        self.a = a
        self.cnt = Counters()
        self.fc = 0
        self.buf_last = {}
        self.tail = []
        self.slow_sites = []
        self.X, self.Y = a.X, a.Y
        self.nh = 0
        self.lastdma = None
        self.sched = [int(x) for x in a.sched.split(",")]
        self.qs = a.qs.split("|")
        assert len(self.qs) == 17
        self.nw = self.nx = self.nt = 0
        self.ool = []
        self.wdone = set()
        self.nr = self.nhop = self.flip = 0
        self.wos = a.wos.split("|")

    def slot(self, n):
        nq = self.a.nq
        if n >= WO0:
            return (4, 0, 2, 1, 3)[(n - WO0) % 5]
        return 5 - nq + (n - NW) % nq if n < NW else (0, 2, 1, 3)[(n - F0) % 4]

    def ndma(self, n):
        return 7 if n < NW else 8

    def dma(self, n, voff, s, soff, imm, fl):
        fl = (fl + " ") if fl else ""
        return I(f"buffer_load_dwordx4 v{voff}, {srd(s)}, s{soff} offen offset:{imm} {fl}lds", tag=("fill", n))

    def half_kv(self, n, kind):
        s, vo, so = (SRD_K, oK, sK) if kind == "K" else (SRD_V, oV, sV)
        a = self.a
        used = {a.eb, a.xb, a.jb, a.wb, a.wc}
        assert len(used) == 5 and a.xb >= 11 and a.jb >= 10
        inc = min(b for b in range(9, 19) if b not in used)
        hole = sum(1 << b for b in used if b > inc)
        pre = [] if a.jb == 10 else [I(f"s_add_u32 s{sJ}, s{so}, {(1 << a.jb) - 1024}")]
        L = [self.dma(n, vo + x, s, sJ if j and pre else so, x * 2048 + j * 1024, a.kvfl) for j in range(2) for x in range(2)]
        L += [I(f"s_add_u32 s{so}, s{so}, {hex((1 << inc) + hole)}")] + ([I(f"s_andn2_b32 s{so}, s{so}, {hex(hole)}")] if hole else [])
        return pre, L

    def half_w(self, n, s, vo, offs):
        pre = [I(f"s_mov_b32 s{sT0}, {offs[0]}"), I(f"s_mov_b32 s{sT1}, {offs[1]}")]
        return pre, [self.dma(n, vo + x, s, (sT0, sT1)[j], x * 2048 + j * 1024, self.a.wfl) for j in range(2) for x in range(2)]

    def role(self, t):
        c = self.a.ring[t]
        k = self.a.ring[:t].count(c)
        return (None, k) if c == "D" else (int(c), (k + self.a.krot) % 3)

    def col(self, t, dst, scale, base):
        st, k = self.role(t)
        if st is None:
            c = (768 + 64 * k) * scale
            return [I(f"s_mov_b32 s{dst}, {c}" if base is None else f"s_add_u32 s{dst}, s{base}, {c}")]
        L = [I(f"s_mul_i32 s{dst}, s{sPc + st}, {(128 if k else 64) * scale}"), I(f"s_add_u32 s{dst}, s{dst}, {(64 * (k - 1) if k else 512) * scale}")]
        return L + ([] if base is None else [I(f"s_add_u32 s{dst}, s{dst}, s{base}")])

    def wo_items(self, n, count):
        L = []
        for _ in range(count):
            todo = [t for t in range(14) if t not in self.wdone]
            if not todo or WO0 + (todo[0] >> 1) - 4 > n:
                break
            st, k = self.role(todo[0])
            want = (None, k ^ 1) if st is None else (st ^ 1, 0) if k == 0 else (st, 3 - k)
            ts = [todo[0]] + [t for t in todo[1:] if self.role(t) == want and WO0 + (t >> 1) - 4 <= n]
            regs = [(sT0, sT1), (92, 93)]
            for t, r in zip(ts, regs):
                L += self.col(t, r[0], 1, None) + [I(f"s_add_u32 s{r[1]}, s{r[0]}, {16 * 896 - 1024}")]
            for j in range(2):
                for x in range(2):
                    for t, r in zip(ts, regs):
                        m = WO0 + (t >> 1)
                        L += [I(f"s_add_u32 m0, s{sW4}, {self.slot(m) * 32768 + (t & 1) * 16384}"), self.dma(m, oWo + x, SRD_WO, r[j], x * 2048 + j * 1024, self.a.wfl)]
            self.wdone.update(ts)
            if self.a.v:
                print('seg', n - WO0, 'wo', ts)
        return L

    def fill_halves(self, n):
        H = []
        for hs in range(2):
            if n < NW and hs == 0:
                pre = [I(f"s_mov_b32 s{sT2}, {n * 64}")]
                d = [self.dma(n, vX + qb, SRD_X, sT2, qb * 1024, self.a.wfl) for qb in range(3)]
            elif n < NW:
                pre, d = self.half_w(n, SRD_WQ, oWq, [n * 262144 + j * (32768 - 1024) for j in range(2)])
            else:
                pre, d = self.half_kv(n, "KV"[(n - F0) & 1])
            m0 = f"s_add_u32 m0, s{sW4}, {self.slot(n) * 32768 + hs * 16384}"
            if n < NW and hs:
                m0 = f"s_add_u32 m0, s{sW8}, {self.slot(n) * 32768 + 16320}"
            H.append((m0, pre, d))
        return H

    def fill(self, n):
        L = []
        for m0, pre, d in self.fill_halves(n):
            L += [I(m0)] + pre + d
        return L

    def halves(self, n, upto):
        L = []
        while self.nh < min(upto, 64):
            h = self.nh
            m = F0 + (h >> 1)
            prev = m - 4 if m - 4 >= F0 else max(k for k in range(NW) if self.slot(k) == self.slot(m))
            assert prev < n, (n, h)
            m0, pre, d = self.fill_halves(m)[h & 1]
            L += [I(m0)] + pre + d
            self.nh += 1
        return L

    def at(self, n, reg, hs):
        sl = self.slot(n)
        return reg, (sl & 1) * 32768 + hs * 16384

    def kfrag(self, n, hs, p, j, ks, czero=False):
        r, o = self.at(n, aK + (ks & 3), hs)
        rd = [lambda b: f"ds_read_b128 {R('a', b, 4)}, v{r} offset:{o + j * 1024 + (ks >> 2) * 256}"]
        init = None if ks else (lambda qb: "0" if czero else R("v", vNm + qb * 4, 4))
        return dict(rd=rd, dst=lambda qb: R("v", S(p, j, qb), 4), bop=lambda qb: R("v", QB(ks, qb), 4), init=init, key=("k", j), size=self.a.gk)

    def tfrag(self, hs, db, dst, bop, czero=False):
        rd = [lambda b, j=j: f"ds_read_b64_tr_b16 {R('a', b + 2 * j, 2)}, v{aV + (db & 7)} offset:{hs * 16384 + j * 1024 + (db >> 3) * 256}" for j in range(2)]
        return dict(rd=rd, dst=dst, bop=bop, init=(lambda qb: "0") if czero else None, key=bop(0), size=self.a.gv)

    def wfrag(self, hs, db, dst, bop, czero=False):
        f = self.tfrag(hs, db, dst, bop, czero)
        f["rd"] = [lambda b, j=j: f"ds_read_b64_tr_b16 {R('a', b + 2 * j, 2)}, v{aW + (db & 1)} offset:{hs * 16384 + (db >> 1) * 2048 + j * 1024}" for j in range(2)]
        return f

    def ufrag(self, i, db, dst, bop, czero=False):
        f = self.tfrag(0, db, dst, bop, czero)
        f["rd"] = [lambda b, j=j: f"ds_read_b64_tr_b16 {R('a', b + 2 * j, 2)}, v{aU[db >> 1 & 3]} offset:{i * 32768 + (db >> 3) * 256 + j * 1024 + (db & 1) * 8}" for j in range(2)]
        return f

    def vfrag(self, n, hs, p, db):
        f = self.tfrag(hs, db, lambda qb: R("a", O(db, qb), 4), lambda qb: R("v", P(p, qb), 4))
        r, o = self.at(n, aV + (db & 7), hs)
        f["rd"] = [lambda b, j=j: f"ds_read_b64_tr_b16 {R('a', b + 2 * j, 2)}, v{r} offset:{o + j * 1024 + (db >> 3) * 256}" for j in range(2)]
        return f

    def trace(self):
        if not self.a.trace:
            return []
        return II("""s_memrealtime s[98:99]
s_memtime s[100:101]
s_lshl_b64 exec, 1, s96
s_add_u32 s96, s96, 1
s_waitcnt lgkmcnt(0)
v_mov_b32 v252, s98
v_mov_b32 v253, s100
s_mov_b64 exec, -1""")

    def leak(self, mark):
        m = self.a.leak.split(",")
        L = []
        for k in range(2):
            if len(m) == 3 and m[k] == str(mark):
                L += II(f"s_waitcnt lgkmcnt(0)\ns_memrealtime s[{98 + 2 * k}:{99 + 2 * k}]\ns_waitcnt lgkmcnt(0)")
        return L

    def hop(self, n):
        if str(n) not in self.a.hops.split(","):
            return []
        k = self.nhop
        self.nhop += 1
        L = ["s_mov_b64 exec, 0"]
        for w in range(3):
            L += [f"s_cmp_eq_u32 s3, {w}", f"s_cbranch_scc1 L_hop{k}_{w}"]
        return [I(x) for x in L + [f"s_branch L_hop{k}_3", f"L_hopped{k}:", "s_mov_b64 exec, -1"]]

    def place_pads(self, code):
        k0 = next(i for i, x in enumerate(code) if x.text == "L_page0:")
        k1 = next(i for i, x in enumerate(code) if x.text == "L_last:")
        stubs = "".join(f"L_hop{k}_{w}:\n" for k in range(self.nhop) for w in range(4))
        sz = sizes(code, '.amdgcn_target "amdgcn-amd-amdhsa--gfx950"\n.text\n' + stubs)
        at, page, pads, src = 0, 1, [], {}
        i = k0
        while i < k1:
            x = code[i]
            if x.text.startswith("L_hopped"):
                src[int(x.text[8:-1])] = len(pads)
            if x.text.startswith(".p2align"):
                al = 1 << int(x.text.split()[1])
                at = -(-at // al) * al
            if at >= page * 4096:
                good = code[i - 1].kind == "mfma" and not x.scalar
                if good or at + sz[i] > page * 4096 + 48:
                    pads.append(i)
                    at += 4
                    page += 1
            at += sz[i]
            i += 1
        counts = [int(c) for c in self.a.hopn.split(",")]
        label, target, nxt = {}, {}, 0
        for k in range(self.nhop):
            nxt = max(nxt, src[k])
            mine = list(range(nxt, min(nxt + counts[k], len(pads))))
            nxt += len(mine)
            for w in range(4):
                ch = mine[w::4]
                if not ch:
                    label.setdefault(("h", k), []).append(f"L_hop{k}_{w}:")
                    continue
                label.setdefault(ch[0], []).append(f"L_hop{k}_{w}:")
                for p, q in zip(ch, ch[1:] + [None]):
                    target[p] = f"L_pad{q}" if q is not None else f"L_hopped{k}"
        out = []
        for i, x in enumerate(code):
            if x.text.startswith("L_hopped"):
                out += [I(l) for l in label.get(("h", int(x.text[8:-1])), [])]
            if i in pads:
                p = pads.index(i)
                out += [I(l) for l in label.get(p, [])] + [I(f"L_pad{p}:"), I(f"s_cbranch_execz {target[p]}" if p in target else "s_nop 0")]
            out.append(x)
        if self.a.v:
            print("pages", len(pads), "warmed", len(target), "sources", src)
        return out

    def put_group(self, tl, fs, needs=()):
        qs = [2, 1, 0] if self.flip else [0, 1, 2]
        self.flip ^= 1
        for x in fs:
            x["m"] = []
        for i, q in enumerate(qs):
            init = {x["dst"](q): x["init"](q) for x in fs if x["init"]}
            for x in (fs[::-1] if i & 1 else fs):
                d = x["dst"](q)
                x["pos"] = tl.pos() - 2
                x.setdefault("first", tl.pos())
                x["m"].append(tl.mfma(f"{MF} {d}, {R('a', x['buf'], 4)}, {x['bop'](q)}, {init.pop(d, d)}",
                                      needs=list(x["ri"]) + list(needs) + list(x.get("needs", [[], [], []])[q])))
        for x in fs:
            self.buf_last[x["buf"]] = x["m"][-1]
            if "more" in x:
                x["mm"] = [tl.mfma(m, needs=x["mneeds"]) for m in x["more"]]

    def groups(self, fs, cuts=()):
        out = []
        for i, f in enumerate(fs):
            if out and i not in cuts and f["key"] == out[-1][1][0]["key"] and len(out[-1][1]) < f["size"]:
                out[-1][1].append(f)
            else:
                out.append((i, [f]))
        return out

    def segment(self, tl, n, frags, hooks=None, dyn=False, upd="", last=False, fills=(), upto=0, extra=(), dwin=None, also=None, first=(), upto_fill=None, notail=False, pace=None):
        hooks = hooks or {}
        X, Y = self.X, self.Y
        p0 = tl.pos()
        st = [] if ((dyn and self.a.trace == 2) or (self.a.trace == 3 and n != WO0)
                    or (self.a.trace == 4 and n not in (F0, WO0)) or (self.a.trace == 6 and n < FL - 1) or (self.a.trace == 7 and (n <= F0 or n > FL or n % 2 == 0))
                    or (self.a.trace == 5 and (dyn or n % 2 or n > F0 + 2) and n not in (F0 + 1, FL, WO0))) else self.trace()

        st = st + ([] if dyn else self.leak(n))
        nhi = NEND if n == WO0 + self.a.lastbar else upto_fill or n

        def barrier(cnt):
            if n > WO0 + self.a.lastbar:
                return st and [I("s_waitcnt lgkmcnt(0)")] + st
            v = 4 * (self.a.lead - 2) if dyn else cnt.need(cnt.vm, lambda x: x.tag and (x.tag[0] == "fill" and n <= x.tag[1] <= nhi or (also and also(x))))
            w = "s_waitcnt " + (f"vmcnt({v}) " if v is not None else "") + "lgkmcnt(0)"
            dip = [I(f"s_sleep {self.a.dipn}")] if n == self.a.dip else []
            return self.hop(n) + dip + [I(w), I("s_barrier", tag=("bar", n, self.ndma(n), nhi))] + st
        bar = tl.add("rd", Lazy(barrier), p0, deps=[self.lastdma] if self.lastdma else [])
        tail, self.tail = self.tail, []
        base = p0 + 3 * (len(tail) - X) - (self.a.rlead if notail else 0)
        nf = len(frags)
        for i, f in enumerate(frags):
            f["buf"] = FRAG0 + 4 * (self.fc % 16)
            self.fc += 1
            f["ri"] = [I(x) for x in f.get("pre", [])] + [I(r(f["buf"])) for r in f["rd"]]
        for _, g in self.groups(tail):
            self.put_group(tl, g)
        seg = dict(p0=p0, p1=tl.pos(), bar=bar, tail=tail, end=p0 + 3 * (len(tail) + nf + 2 * sum("more" in f for f in frags) - (0 if last or notail else X)))
        if n >= WO0 + self.a.lastbar or notail:
            Y = 1
        span = 3.0 * (nf - Y) / nf
        for i, f in enumerate(frags):
            for k, r in enumerate(f["ri"]):
                tl.add("rd", r, base + span * (i + k / len(f["ri"])))
        for f in frags:
            if f.get("late"):
                for r in f["ri"][:3]:
                    tl.streams["rd"].remove(r)
                    tl.add("rx", r, seg["p1"], deps=[bar, tail[-1]["m"][-1]])
        nhead = nf if last or notail else nf - X
        for i, g in self.groups(frags, set(hooks) | {nhead}):
            for f in g:
                if self.buf_last.get(f["buf"]) is not None:
                    f["ri"][0].deps.append(self.buf_last[f["buf"]])
            if i < nhead:
                self.put_group(tl, g, hooks[i](tl, seg) if i in hooks else [])
            else:
                self.tail += g
        nxt = 1e9
        for i, f in reversed(list(enumerate(frags))):
            use = f.get("first", seg["end"] + i - nhead)
            for r in reversed(f["ri"]):
                if r.stream == "rd" and self.a.minlead:
                    nxt = r.target = min(r.target, use - self.a.minlead, nxt - 1)
        if not last:
            regs = ([aX] if "X" in upd else []) + ([aK + i for i in range(4)] if "K" in upd else []) + ([aV + i for i in range(8)] if "V" in upd else []) + ([aW, aW + 1] if "W" in upd else []) + (list(aU) if "U" in upd else [])
            dl = (self.slot((upto_fill or n) + 1) - self.slot(n)) * 32768
            ups = [I(f"v_add_u32 v{r}, {hex(dl & 0xffffffff)}, v{r}") for r in regs]
        if first:
            tl.spread("dma", first, p0 + 1, p0 + 1 + 1.5 * len(first), deps=[bar])
            self.lastdma = first[-1]
        fl = []
        for m in fills:
            fl += self.fill(m)
        fl += self.halves(n, upto) + list(extra)
        if fl:
            lo, hi = dwin or (self.a.dmalo, self.a.dmaspan)
            tl.spread("dma", fl, p0 + 1 + (seg["end"] - p0) * lo, p0 + 1 + (seg["end"] - p0) * hi, deps=[bar])
            self.lastdma = fl[-1]
            dm = [x for x in fl if x.kind == "vmem"]
            if pace:
                b, e, z = pace[0] * 96, pace[1] * 96, seg["end"] - p0 - 4
                ps = [b + (e - b) * i / 3 for i in range(4)] + [e + (z - e) * (i + 1) / (len(dm) - 4) for i in range(len(dm) - 4)]
                if self.a.pair and len(dm) == 8:
                    ps = [ps[i + 1] - self.a.pair if i % 2 == 0 else ps[i] for i in range(8)]
                nxt = seg["end"] - 2
                for x in reversed(fl):
                    if x.kind == "vmem":
                        nxt = p0 + ps[dm.index(x)]
                        x.target = nxt
                    else:
                        nxt = x.target = max(p0 + 1, min(nxt, seg["end"] - 2) - 1.5)
        if not last:
            tl.spread("rd", ups, seg["end"] - 3 * Y, seg["end"] - 1)
        return seg

    def softmax(self, blocks=None):
        blocks = blocks or [(p, j, qb) for p in range(2) for j in range(2) for qb in range(3)]
        L, post = [], []
        for bi, (p, j, qb) in enumerate(blocks):
            e = vE + 4 * (bi & 1)
            for r in range(4):
                L.append(I(f"v_exp_f32 v{e + r}, v{S(p, j, qb) + r}"))
                L[-1].blk = None if r else (p, j, qb)
                L += post[:2] if r == 0 else post[2:] if r == 2 else []
            d = P(p, qb) + 2 * j
            post = II(f"v_cvt_pk_bf16_f32 v{d}, v{e}, v{e + 1}\nv_cvt_pk_bf16_f32 v{d + 1}, v{e + 2}, v{e + 3}\n"
                      f"v_or3_b32 v{vT}, v{d}, v{d + 1}, " + (f"v{vT}" if bi else "0"))
        return L + post + II(f"v_and_b32 v{vTmp}, 0x40004000, v{vT}\nv_cmp_ne_u32 vcc, 0, v{vTmp}")

    def put_softmax(self, tl, p0, floor=0):
        done = {}
        for k in range(p0, tl.pos()):
            done[tl.mf[k].wr[0]] = k
        order = sorted(((p, j, qb) for p in range(2) for j in range(2) for qb in range(3)), key=lambda b: done[f"v{S(*b)}"])
        t = floor
        for x in self.softmax(order):
            dep = []
            if getattr(x, "blk", None):
                k = done[f"v{S(*x.blk)}"]
                t, dep = max(t, min(k + 1 + self.a.smlag, tl.pos())), [tl.mf[k]]
            tl.add("sm", x, t, deps=dep)

    def check(self, tl, p, after, target):
        k = len(self.slow_sites)
        self.slow_sites.append(p)
        br = tl.add("sm", Lazy(lambda cnt: [I(f"s_cbranch_vccnz L_slow{k}"), I(f"L_back{k}:")]), target, deps=after)
        return br

    def xlane(self, regs, op):
        L = []
        for sw in ("v_permlane16_swap_b32", "v_permlane32_swap_b32"):
            L += [f"v_mov_b32 v{vTmp + 4 + i}, v{r}" for i, r in enumerate(regs)]
            L += [f"{sw} v{r}, v{vTmp + 4 + i}" for i, r in enumerate(regs)]
            L += [f"{op} v{r}, v{r}, v{vTmp + 4 + i}" for i, r in enumerate(regs)]
        return L

    def tilemax(self, ps):
        L, mx = [], [vTmp + 1 + qb for qb in range(3)]
        for step in range(4 * len(ps)):
            for qb in range(3):
                v = [S(p, j, qb) + r for p in ps for j in range(2) for r in range(4)]
                if step == 0:
                    L.append(f"v_max_f32 v{mx[qb]}, v{v[0]}, v{v[1]}")
                else:
                    L.append(f"v_max3_f32 v{mx[qb]}, v{mx[qb]}, v{v[2 * step]}, v{v[2 * step + 1]}")
        return L + self.xlane(mx, "v_max_f32"), mx

    def slow_routine(self, p):
        L = [f"L_rescale{p}:", "s_nop 15"]
        m, mx = self.tilemax((0, 1))
        L += m
        L += [f"v_add_f32 v{r}, {f32(self.a.tref)}, v{r}" for r in mx]
        L += [f"v_max_f32 v{r}, 0, v{r}" for r in mx]
        for qb in range(3):
            L += [f"v_sub_f32 v{vNm + qb * 4 + r}, v{vNm + qb * 4 + r}, v{mx[qb]}" for r in range(4)]
            for pp in range(2):
                for j in range(2):
                    L += [f"v_sub_f32 v{S(pp, j, qb) + r}, v{S(pp, j, qb) + r}, v{mx[qb]}" for r in range(4)]
        L += [f"v_exp_f32_e64 v{r}, -v{r}" for r in mx]
        L += [f"v_mul_f32 v{LA[qb]}, v{LA[qb]}, v{mx[qb]}" for qb in range(3)]
        for db in range(16):
            for qb in range(3):
                L += [f"v_accvgpr_read_b32 v{vE + r}, a{O(db, qb) + r}" for r in range(4)]
                L += [f"v_mul_f32 v{vE + r}, v{vE + r}, v{mx[qb]}" for r in range(4)]
                L += [f"v_accvgpr_write_b32 a{O(db, qb) + r}, v{vE + r}" for r in range(4)]
        L = [I(x) for x in L] + self.softmax()[:-2]
        return L + [I("s_nop 3"), I(f"s_setpc_b64 s[{sRet}:{sRet + 1}]")]

    def upto(self, u):
        return self.nh + self.sched[u] if u < len(self.sched) else 2 * u + 2 + self.a.lead

    def paced(self, u, b, e):
        return dict(pace=(b, e)) if self.nh <= 2 * u + self.a.lead else dict(dwin=(0.05, 0.9))

    def seg_qk(self, tl, u, dyn):
        a = self.a
        frags = [self.kfrag(F0 + u, p, p, j, ks) for p in range(2) for j in range(2) for ks in range(8)]
        extra = []
        if u == 30:
            extra = [Lazy(self.dbg_check)] + II(f"""buffer_load_dword v218, v214, {srd(SRD_FLG)}, s{sIds} offen sc1""") + self.tail_tokens(F0 + u)
        seg = self.segment(tl, F0 + u, frags, dyn=dyn, upto=self.upto(u), extra=extra, notail=True, **self.paced(u, a.vbeg, a.vend))
        self.put_softmax(tl, seg["p1"])
        return seg

    def seg_pv(self, tl, u, dyn, hooks=None, **kw):
        a = self.a
        fr = [self.vfrag(F0 + u, h, h, db) for db in range(16) for h in range(2)]
        for i, f in enumerate(fr):
            f["key"], f["size"] = i >> 1, a.gf
            if u == 1 and not i & 1 and i < 32 - self.X:
                f["init"] = lambda qb: "0"
        fr[1]["more"] = [f"{MF} {R('v', LA[qb], 4)}, {R('v', vOne, 4)}, {R('v', P(p ^ (qb & 1), qb), 4)}, " + ("0" if u == 1 and p == 0 else R("v", LA[qb], 4))
                         for qb in range(3) for p in range(2)]
        fr[1]["mneeds"] = [self.ones]

        def h0(tl, seg):
            seg["bar"].deps.append(tl.streams["sm"][-a.both])
            self.ladd = self.check(tl, 0, [], seg["p1"])
            return [fr[self.X + 1]["ri"][-1], self.ladd]
        if u == 1:
            kw["extra"] = II(f"""buffer_load_dword v239, off, {srd(SRD_DBG)}, 0 sc1
v_mbcnt_lo_u32_b32 v213, -1, 0
v_mbcnt_hi_u32_b32 v213, -1, v213
v_lshlrev_b32 v{vLn}, 12, v213
v_lshlrev_b32 v{vTd}, 12, v{oSt}
v_and_b32 v214, 3, v213
v_lshlrev_b32 v214, {a.fsh}, v214""")
            kw["first"], kw["extra"] = kw["extra"], []
        if u < 31:
            kw.update(upto=self.upto(u), **self.paced(u, a.wbeg, a.wend))
        self.pvf = fr
        return self.segment(tl, F0 + u, fr, hooks={**(hooks or {}), 0: h0}, dyn=dyn, **kw)

    def tail_win(self, n):
        t = self.wos[n - FL + 1] if n - FL + 1 < len(self.wos) else ""
        return 0.1 * t.count("."), 0.92 - 0.1 * t.count(",")

    def tail_tokens(self, n, toks=None):
        L = []
        if toks is None:
            toks = self.wos[n - FL + 1] if n - FL + 1 < len(self.wos) else ""
        for c in toks:
            if c == "P":
                L += self.wo_items(n, 1)
            elif c == "O":
                L += II(f"buffer_load_dword v{aX}, v215, {srd(SRD_WO)}, s{sTo} offen")
            elif c == "R":
                L += II(f"buffer_load_dword v{192 + self.nr}, v{vCp}, {srd(SRD_GRP)}, s{sTo + 1} offen\ns_add_u32 s{sTo + 1}, s{sTo + 1}, {36 * 128}")
                self.nr += 1
        return L

    def vwait(self, cnt, pred):
        v = cnt.need(cnt.vm, pred)
        return [] if v is None else [I(f"s_waitcnt vmcnt({min(v, 63)})")]

    def spin(self, nm, load, reg, test, back):
        self.ool += II(f"""{nm}:
s_sleep {self.a.pollsleep}
{load}
s_waitcnt vmcnt(0)
v_readfirstlane_b32 s{sPv}, v{reg}
s_nop 1
{test}
s_cbranch_scc0 {back}
s_sub_u32 s{sSpin}, s{sSpin}, 1
s_cbranch_scc0 {nm}
s_endpgm""")

    def dbg_check(self, cnt):
        self.spin("L_dbg", f"buffer_load_dword v239, off, {srd(SRD_DBG)}, 0 sc1", 239, f"s_and_b32 s{sPv}, s{sPv}, 15", "L_dbgok")
        return self.vwait(cnt, lambda x: "v239" in x.wr) + II(f"""v_readfirstlane_b32 s{sPv}, v239
s_nop 1
s_and_b32 s{sPv}, s{sPv}, 15
s_cbranch_scc1 L_dbg
L_dbgok:""")

    def die_check(self, cnt):
        return self.vwait(cnt, lambda x: "v218" in x.wr) + II(f"""v_cmp_ne_u32 s[{sFb}:{sFb + 1}], s{sXcc}, v218
s_nop 1
s_cmp_lg_u64 s[{sFb}:{sFb + 1}], {-1 if self.a.forcefb else 0}
s_cselect_b32 s{sPv}, {QSTR}, 0
s_cselect_b64 s[{sFb}:{sFb + 1}], -1, 0""")

    def init(self):
        a = self.a
        L = II(f"""s_cmp_ge_u32 s2, 256
s_cbranch_scc1 L_end
s_load_dwordx16 s[44:59], s[0:1], 0
s_load_dwordx4 s[60:63], s[0:1], 64
s_load_dwordx4 s[88:91], s[0:1], 80
s_load_dwordx2 s[64:65], s[0:1], 96
v_lshrrev_b32 v1, 6, v0
v_and_b32 v2, 63, v0
v_readfirstlane_b32 s3, v1
s_and_b32 s4, s2, 7
s_lshr_b32 s92, s2, 3
s_lshr_b32 s6, s4, 2
s_and_b32 s4, s4, 3
s_lshl_b32 s4, s4, 2
{'s_and_b32 s93, s92, 3' if a.map else 's_lshr_b32 s93, s92, 3'}
s_add_u32 s4, s4, s93
{'s_lshr_b32 s7, s92, 2' if a.map else 's_and_b32 s7, s92, 7'}
s_lshl_b32 s{sW4}, s3, 12
v_lshrrev_b32 v3, 5, v2
v_and_b32 v4, 31, v2
v_and_b32 v5, 1, v1
v_lshlrev_b32 v5, 3, v5
v_lshl_or_b32 v5, v3, 1, v5
v_xor_b32 v6, v4, v5
v_xor_b32 v7, 4, v6
v_lshl_add_u32 v8, v1, 3, v3
v_lshlrev_b32 v9, 13, v8
v_lshlrev_b32 v12, 2, v3
v_xor_b32 v12, v12, v4
v_xor_b32 v13, 8, v12
v_lshl_add_u32 v{oWq}, v12, 4, v9
v_lshl_add_u32 v{oWq + 1}, v13, 4, v9
s_mul_i32 s{sW8}, s3, 4104
v_add_u32 v{oWq + 1}, {2 * 8192 - 2048}, v{oWq + 1}
v_and_b32 v10, 15, v2
v_lshrrev_b32 v11, 4, v2
v_lshrrev_b32 v19, 2, v2
v_and_b32 v20, 3, v2
v_mul_u32_u24 v12, 48, v1
v_add_u32 v12, v12, v19
v_mul_u32_u24 v12, 896, v12
v_sub_u32 v13, 0, v11
v_xor_b32 v13, v13, v20
v_and_b32 v13, 3, v13
v_lshl_add_u32 v{vX}, v13, 4, v12
v_add_u32 v{vX + 1}, {16 * 896 - 1024}, v{vX}
v_add_u32 v{vX + 2}, {32 * 896 - 2048}, v{vX}
s_waitcnt lgkmcnt(0)
s_cmp_eq_u32 s6, 0
s_cselect_b64 s[{SRD_X}:{SRD_X + 1}], s[44:45], s[54:55]
s_cselect_b64 s[{SRD_K}:{SRD_K + 1}], s[46:47], s[56:57]
s_cselect_b64 s[{SRD_V}:{SRD_V + 1}], s[48:49], s[58:59]
s_cselect_b64 s[{SRD_WQ}:{SRD_WQ + 1}], s[50:51], s[60:61]
s_cselect_b64 s[{SRD_WO}:{SRD_WO + 1}], s[52:53], s[62:63]
s_mul_i32 s94, s7, 172032
s_add_u32 s{SRD_X}, s{SRD_X}, s94
s_addc_u32 s{SRD_X + 1}, s{SRD_X + 1}, 0
s_mov_b32 s{SRD_X + 2}, 172032
s_mov_b32 s{SRD_X + 3}, 0x20000
s_lshl_b32 s94, s4, 9
s_add_u32 s{SRD_WQ}, s{SRD_WQ}, s94
s_addc_u32 s{SRD_WQ + 1}, s{SRD_WQ + 1}, 0
s_mov_b32 s{SRD_WQ + 2}, {447 * 8192 + 512}
s_mov_b32 s{SRD_WQ + 3}, 0x20000""")
        L[2:2] = self.leak("s")
        if a.trace:
            L[2:2] = II("s_mov_b32 s96, 0\nv_mov_b32 v252, 0\nv_mov_b32 v253, 0") + self.trace()
        tcalc = II(f"""s_lshl_b32 s94, s7, 2
s_add_u32 s94, s94, s3
s_lshl_b32 s94, s94, 13
v_lshl_add_u32 v13, v19, 18, s94
v_lshl_add_u32 v13, v20, 7, v13
v_cmp_gt_u32 vcc, {4 * a.tb}, v2
v_mov_b32 v16, 0x40000000
s_and_b32 s94, s4, 3
s_lshl_b32 s94, s94, 2
v_cndmask_b32 v{vTw}, v16, v13, vcc
s_add_u32 s94, s94, s3
s_mul_i32 s94, s94, {12 * 896}
v_mul_u32_u24 v13, 43, v2
v_lshrrev_b32 v13, 9, v13
v_mul_u32_u24 v14, 12, v13
v_sub_u32 v14, v2, v14
v_mul_u32_u24 v14, 896, v14
v_lshl_add_u32 v13, v13, 7, v14
v_cmp_gt_u32 vcc, {6 * a.tb}, v2
v_add_u32 v13, s94, v13
s_nop 0
v_cndmask_b32 v{vTw + 1}, v16, v13, vcc""")
        kv = II(f"""s_lshl_b32 s94, s7, 4
s_add_u32 s94, s94, s4
s_lshl_b32 s95, s94, 19
s_add_u32 s{SRD_K}, s{SRD_K}, s95
s_addc_u32 s{SRD_K + 1}, s{SRD_K + 1}, 0
s_mov_b32 s{SRD_K + 2}, 0x80000
s_mov_b32 s{SRD_K + 3}, 0x20000
s_add_u32 s{SRD_V}, s{SRD_V}, s95
s_addc_u32 s{SRD_V + 1}, s{SRD_V + 1}, 0
s_mov_b32 s{SRD_V + 2}, 0x80000
s_mov_b32 s{SRD_V + 3}, 0x20000
s_mov_b32 s{sK}, 0
s_mov_b32 s{sV}, 0
v_and_b32 v9, 1, v1
v_lshlrev_b32 v9, {a.wb}, v9
v_lshrrev_b32 v12, 1, v1
v_lshl_add_u32 v9, v12, {a.wc}, v9
v_lshl_add_u32 v9, v3, {a.eb}, v9
v_lshl_add_u32 v{oV}, v6, 4, v9
v_lshl_add_u32 v{oV + 1}, v7, 4, v9
v_lshl_or_b32 v12, v1, 2, v3
v_xor_b32 v12, v4, v12
v_xor_b32 v13, 2, v12
v_lshl_add_u32 v{oK}, v12, 4, v9
v_lshl_add_u32 v{oK + 1}, v13, 4, v9
v_add_u32 v{oK + 1}, {(1 << a.xb) - 2048}, v{oK + 1}
v_add_u32 v{oV + 1}, {(1 << a.xb) - 2048}, v{oV + 1}
v_mul_u32_u24 v13, 3072, v1
v_lshl_add_u32 v{oSt}, v2, 4, v13""")
        rest = f"""s_lshl_b32 s95, s6, 3
s_add_u32 s95, s95, s7
s_mul_i32 s93, s95, {GSTR}
s_add_u32 s{SRD_GRP}, s64, s93
s_addc_u32 s{SRD_GRP + 1}, s65, 0
s_mov_b32 s{SRD_GRP + 2}, {GSTR}
s_mov_b32 s{SRD_GRP + 3}, 0x20000
s_mul_i32 s93, s95, {a.flagstride}
s_add_u32 s93, s93, {FLAGOFF}
s_add_u32 s{SRD_FLG}, s64, s93
s_addc_u32 s{SRD_FLG + 1}, s65, 0
s_mov_b32 s{SRD_FLG + 2}, 4096
s_mov_b32 s{SRD_FLG + 3}, 0x20000
s_getreg_b32 s{sXcc}, hwreg(HW_REG_XCC_ID, 0, 4)
s_lshl_b32 s{sMyF}, s4, {a.fsh}
s_lshr_b32 s93, s4, 2
s_lshl_b32 s{sIds}, s93, {a.fsh + 2}
s_add_u32 s{sIds}, s{sIds}, 4
s_mul_i32 s{sSt + 3}, s93, {QSTR}
s_mul_i32 s{sSt}, s93, {4 * QSTR}
s_lshl_b32 s93, s93, 7
s_lshl_b32 s94, s3, 2
s_add_u32 s93, s93, s94
s_add_u32 s93, s93, 2048
s_and_b32 s94, s4, 3
s_lshl_b32 s94, s94, 4
s_add_u32 s{sMyR}, s93, s94
s_xor_b32 s{sPrR}, s{sMyR}, 16
s_xor_b32 s{sPrR + 1}, s{sMyR}, 32
v_mov_b32 v{vL}, 0
v_mov_b32 v21, s{sXcc}
v_lshlrev_b32 v22, 12, v2
v_lshlrev_b32 v23, 12, v0
buffer_store_dword v{vL}, v23, {srd(SRD_FLG)}, s{sMyF} offen sc1
buffer_store_dword v21, v23, {srd(SRD_FLG)}, s{sMyF} offen offset:4 sc1
buffer_store_dword v{vL}, v22, {srd(SRD_FLG)}, s{sMyR} offen sc1
s_add_u32 s{sSt + 3}, s{sSt + 3}, {FBASE}
s_add_u32 s{sSt}, s{sSt}, {RBASE}
s_and_b32 s{sPc}, s4, 3
s_xor_b32 s{sPc + 1}, s{sPc}, 1
s_xor_b32 s{sPc + 2}, s{sPc}, 3
s_xor_b32 s{sPc + 3}, s{sPc}, 2
s_mul_i32 s{sD}, s4, {DSTR}
s_mov_b32 s{sSpin}, 0x40000
s_lshl_b32 s93, s95, 4
s_add_u32 s{SRD_DBG}, s90, s93
s_addc_u32 s{SRD_DBG + 1}, s91, 0
s_mov_b32 s{SRD_DBG + 2}, 4
s_mov_b32 s{SRD_DBG + 3}, 0x20000
s_mul_i32 s93, s7, {192 * 1792}
s_mul_i32 s94, s6, 896
s_add_u32 s93, s93, s94
s_add_u32 s{SRD_OUT}, s88, s93
s_addc_u32 s{SRD_OUT + 1}, s89, 0
s_mov_b32 s{SRD_OUT + 2}, {191 * 1792 + 896}
s_mov_b32 s{SRD_OUT + 3}, 0x20000
s_lshl_b32 s{sGw}, s3, 4
s_add_u32 s{sGw}, s{sGw}, s4
s_lshr_b32 s93, s4, 2
s_sub_u32 s93, s{sGw}, s93
s_cmp_eq_u32 s3, 3
s_cselect_b32 s{sGw}, s93, s{sGw}
s_and_b32 s93, s4, s3
s_add_u32 s94, s7, 60
s_cmp_eq_u32 s93, 3
s_cselect_b32 s{sGw}, s94, s{sGw}
s_sub_u32 s94, s{sGw}, 24
s_mul_i32 s93, s94, 5462
s_lshr_b32 s93, s93, 16
s_mul_i32 s93, s93, 36
s_add_u32 s94, s94, s93
s_add_u32 s93, s{sGw}, 144
s_cmp_lt_u32 s{sGw}, 24
s_cselect_b32 s93, s93, s94
s_cselect_b32 s94, s{sGw}, s94
s_cselect_b32 s95, 0, {FBASE}
s_mov_b32 s{sRq + 1}, {HC}
s_cselect_b32 s{sRq + 1}, {4 * DSTR}, s{sRq + 1}
s_mov_b32 s{sRb + 1}, {QSTR}
s_cselect_b32 s{sRb + 1}, {DSTR}, s{sRb + 1}
s_lshl_b32 s94, s94, 10
s_add_u32 s{sRb}, s94, s95
s_mov_b32 s{sRq}, 0
s_lshl_b32 s{sRq + 2}, s{sRq + 1}, 1
s_add_u32 s{sRq + 3}, s{sRq + 2}, s{sRq + 1}
s_mul_i32 s94, s93, 5462
s_lshr_b32 s94, s94, 16
s_mul_i32 s95, s94, 12
s_sub_u32 s95, s93, s95
s_mul_i32 s95, s95, {16 * 1792}
s_lshl_b32 s94, s94, 6
s_add_u32 s{sOo}, s94, s95
s_mul_i32 s95, s4, 229376
s_add_u32 s{SRD_WO}, s{SRD_WO}, s95
s_addc_u32 s{SRD_WO + 1}, s{SRD_WO + 1}, 0
s_sub_u32 s{SRD_WO}, s{SRD_WO}, 4096
s_subb_u32 s{SRD_WO + 1}, s{SRD_WO + 1}, 0
s_mov_b32 s{SRD_WO + 2}, {229376 + 4096}
s_mov_b32 s{SRD_WO + 3}, 0x20000
s_mov_b32 s{sC}, {f32(1.4426950408889634 / 16)}
v_lshl_add_u32 v13, v1, 6, v19
v_mul_u32_u24 v13, 896, v13
v_and_b32 v14, 1, v11
v_lshlrev_b32 v14, 1, v14
v_xor_b32 v15, v14, v20
v_lshl_add_u32 v13, v15, 4, v13
v_add_u32 v{oWo}, 4096, v13
v_add_u32 v{oWo + 1}, {4096 + 32 * 896 - 2048}, v13
v_lshrrev_b32 v15, 1, v20
v_or_b32 v15, v15, v14
v_lshlrev_b32 v15, 4, v15
v_lshl_add_u32 v15, v19, 6, v15
v_and_b32 v14, 1, v2
v_lshl_add_u32 v255, v14, 3, v15
v_lshrrev_b32 v13, 1, v10
v_and_b32 v14, 1, v10
v_lshl_add_u32 v13, v13, 2, v14
v_lshlrev_b32 v13, 9, v13
v_and_b32 v14, 1, v11
v_xor_b32 v15, v11, v10
v_lshl_add_u32 v13, v15, 4, v13
v_add_u32 v{aK}, {self.slot(F0) * 32768}, v13
v_xor_b32 v{aK + 1}, 64, v{aK}
v_xor_b32 v{aK + 2}, 128, v{aK}
v_xor_b32 v{aK + 3}, 192, v{aK}
v_bfe_u32 v13, v2, 3, 1
v_bfe_u32 v15, v2, 2, 1
v_lshlrev_b32 v16, 3, v11
v_lshl_add_u32 v16, v13, 2, v16
v_add_u32 v16, v16, v15
v_lshlrev_b32 v16, 9, v16
v_lshlrev_b32 v17, 3, v14
v_lshl_or_b32 v17, v13, 2, v17
v_lshl_or_b32 v17, v15, 1, v17
v_bfe_u32 v18, v2, 1, 1
v_or_b32 v17, v17, v18
v_lshl_add_u32 v16, v17, 4, v16
v_and_b32 v18, 1, v2
v_lshl_add_u32 v16, v18, 3, v16
v_add_u32 v{aV}, 0x10000, v16
v_mul_u32_u24 v16, 4104, v11
v_lshl_add_u32 v16, v13, 11, v16
v_lshl_add_u32 v16, v15, 9, v16
v_add_u32 v16, {self.slot(0) * 32768 + 16320}, v16
v_lshl_add_u32 v{aU[0]}, v10, 4, v16
v_xor_b32 v17, 4, v10
v_lshl_add_u32 v{aU[1]}, v17, 4, v16
v_xor_b32 v17, 8, v10
v_lshl_add_u32 v{aU[2]}, v17, 4, v16
v_xor_b32 v17, 12, v10
v_lshl_add_u32 v{aU[3]}, v17, 4, v16
v_lshrrev_b32 v13, 2, v10
v_sub_u32 v13, 0, v13
v_xor_b32 v13, v13, v11
v_and_b32 v13, 3, v13
v_lshlrev_b32 v13, 4, v13
v_lshl_add_u32 v13, v10, 6, v13
v_lshl_add_u32 v13, v1, 12, v13
v_add_u32 v{aX}, {self.slot(0) * 32768}, v13
v_mov_b32 v{vT}, 1"""
        rest = rest.split("\n")
        code = II(f"""s_getpc_b64 s[94:95]
L_pc:
s_lshl_b32 s93, s92, 2
s_add_u32 s93, s93, s3
s_lshl_b32 s93, s93, 9
v_lshl_add_u32 v13, v20, 7, s93
v_min_u32 v13, L_last-L_page0, v13
v_add_u32 v13, L_page0-L_pc, v13
v_mov_b32 v15, s95
v_add_co_u32 v14, vcc, s94, v13
s_nop 1
v_addc_co_u32 v15, vcc, 0, v15, vcc
global_load_dword v231, v[14:15], off""") if a.ctouch else []
        rest += [f"v_xor_b32 v{aV + i}, {32 * i}, v{aV}" for i in range(1, 8)]
        rest += f"""s_lshl_b32 s93, s7, 2
s_add_u32 s93, s93, s3
s_mul_i32 s93, s93, {56 * 128}
s_add_u32 s{sTo}, s93, 4096
s_lshl_b32 s93, s{sPc}, 2
s_add_u32 s93, s93, s3
s_mul_i32 s93, s93, {72 * 128}
s_add_u32 s{sTo + 1}, s93, s{sSt}
v_min_u32 v215, 55, v2
v_lshlrev_b32 v215, 7, v215
v_min_u32 v{vCp}, {35 * 128}, v215""".split("\n")
        T = self.trace if a.itrace else (lambda: [])
        late = kv + [I(x) for x in rest]
        if a.pre:
            soon = lambda x: x.kind == "valu" or x.mn == "s_getreg_b32"
            k = max(i for i, x in enumerate(L) if x.text == "s_waitcnt lgkmcnt(0)")
            L[k:k] = code + tcalc + [x for x in late if soon(x)]
            code, tcalc, late = [], [], [x for x in late if not soon(x)]
        L += T() + self.tokens(-1, self.qs[0]) + code + tcalc + self.tokens(-1, self.qs[1]) + T() + late + self.tokens(-1, self.qs[2]) + T()
        L += II("s_branch L_page0\n.p2align 12\nL_page0:")
        for x in L:
            self.cnt.see(x)
        return L

    def tokens(self, n, toks):
        L = []
        for t in toks:
            if t == "W":
                L += self.tokens(n, "Q" if self.nw & 1 else "XQ")
            elif t == "X":
                k = self.nx
                assert k + 1 <= max(n, 0) + 4
                L += II(f"s_mov_b32 s{sT2}, {k * 64}\ns_mov_b32 s{sX2}, {k * 64 + 64}")
                for qb in range(3):
                    for m, so in ((k, sT2), (k + 1, sX2)):
                        L += [I(self.fill_halves(m)[0][0]), self.dma(m, vX + qb, SRD_X, so, qb * 1024, self.a.wfl)]
                self.nx += 2
            elif t == "Q":
                assert self.nw <= max(n, 0) + 4
                m0, pre, d = self.fill_halves(self.nw)[1]
                L += [I(m0)] + pre + d
                self.nw += 1
            elif t == "T":
                k0 = self.a.t0 + self.nt * self.a.tb
                L += II(f"""s_mov_b32 s{sT0}, {k0 * 262144}
s_mov_b32 s{sT1}, {k0 // 2 * 128}
buffer_load_dword v231, v{vTw}, {srd(SRD_WQ)}, s{sT0} offen {self.a.tfl}
buffer_load_dword v231, v{vTw + 1}, {srd(SRD_X)}, s{sT1} offen {self.a.tfl}""")
                self.nt += 1
            elif t == "K":
                L += II(f"buffer_load_dword v231, off, {srd(SRD_K)}, s{sK} nt\nbuffer_load_dword v231, off, {srd(SRD_V)}, s{sV} nt")
            elif t == "O":
                L += II(f"buffer_load_dword v214, v215, {srd(SRD_WO)}, s{sTo} offen")
            elif t == "R":
                L += II(f"buffer_load_dword v214, v{vCp}, {srd(SRD_GRP)}, s{sTo + 1} offen\ns_add_u32 s{sTo + 1}, s{sTo + 1}, {36 * 128}")
            elif t == "H":
                L += self.halves(n, self.nh + 1)
        return L

    def qproj(self, tl):
        a = self.a
        nj = NW - 1 - a.joint
        for n in range(nj + 1):
            ks_ = [n] if n < nj else list(range(n, NW))
            frags = [self.ufrag(k - n, db, lambda qb, db=db: R("v", QA(db, qb), 4), lambda qb, k=k: R("v", XB(k, qb), 4), czero=(k == 0))
                     for db in range(16) for k in ks_]
            for i, k in enumerate(ks_):
                assert self.slot(k) == self.slot(n) + i
                frags[i]["pre"] = [f"ds_read_b128 {R('v', XB(k, qb), 4)}, v{aX} offset:{i * 32768 + qb * 1024}" for qb in range(3)]
                frags[i]["late"] = i > 0
            self.qlast = frags[len(ks_) - 1::len(ks_)]
            frags = [f for _, f in sorted(enumerate(frags), key=lambda t: t[0] + 5.5 * (t[0] % len(ks_)))]
            toks = "".join(self.qs[3 + k] for k in ks_)
            extra = self.tokens(n, toks)
            if n == 11:
                extra += II(f"buffer_atomic_add v{vT}, v{oSt}, {srd(SRD_DBG)}, 0 offen sc1")
            dwin = (0.1 * toks.count("."), 0.92 - 0.1 * toks.count(","))
            seg = self.segment(tl, n, frags, upd="XU" if n < nj else "", extra=extra, dwin=dwin, upto_fill=ks_[-1])
            if n == 11:
                self.ones = tl.spread("z", II(f"""v_and_b32 v{vOne}, 0xf0, v{oSt}
v_cmp_eq_u32 vcc, 0, v{vOne}
v_mov_b32 v{vOne + 1}, 0x3f803f80
s_nop 0
v_cndmask_b32 v{vOne}, 0, v{vOne + 1}, vcc
v_mov_b32 v{vOne + 1}, v{vOne}
v_mov_b32 v{vOne + 2}, v{vOne}
v_mov_b32 v{vOne + 3}, v{vOne}"""), seg["p0"] + 2, seg["end"], deps=[seg["bar"]])[-1]
                assert self.nx == NW
            if n == 7:
                assert self.X % 2 == 0
                tl.spread("z", [f"v_accvgpr_write_b32 a{i}, 0" for i in range(O(16 - self.X // 2, 0), 192)], seg["p0"], seg["end"] - 9)

    def qconv(self, tl):
        last = {}
        for ks in range(8):
            L = []
            for qb in range(3):
                s, d = QA(2 * ks, qb), QB(ks, qb)
                L += [f"v_mul_f32 v{s + i}, s{sC}, v{s + i}" for i in range(8)]
                L += [f"v_cvt_pk_bf16_f32 v{d + i}, v{s + 2 * i}, v{s + 2 * i + 1}" for i in range(4)]
            f = self.qlast[2 * ks + 1]
            for x in L:
                last[ks] = tl.add("cv", x, f["pos"] + 6, deps=[f["m"][-1]])
        return last

    def first(self, tl):
        fr = [self.kfrag(F0, 0, 0, j, ks, czero=True) for ks in range(8) for j in range(2)]
        fr += [self.kfrag(F0, 1, 1, j, ks) for j in range(2) for ks in range(8)]

        def h0(tl, seg):
            cv = self.qconv(tl)
            for i in range(16):
                fr[i]["needs"] = [[cv[max(i >> 1, 1)]]] * 3
            return []

        def h16(tl, seg):
            m, mx = self.tilemax((0,))
            m += [f"v_add_f32 v{r}, {f32(self.a.tref)}, v{r}" for r in mx]
            m += [f"v_sub_f32 v{vNm + qb * 4 + r}, 0, v{mx[qb]}" for qb in range(3) for r in range(4)]
            nm = tl.spread("sm", m, tl.pos(), tl.pos(), deps=[fr[15]["m"][-1]])[-1]
            tl.spread("sm", [f"v_sub_f32 v{S(0, j, qb) + r}, v{S(0, j, qb) + r}, v{mx[qb]}" for j in range(2) for qb in range(3) for r in range(4)], tl.pos(), tl.pos())
            return [nm]
        seg = self.segment(tl, F0, fr, hooks={0: h0, 16: h16}, upto=self.upto(0), dwin=(0.0, 0.9), notail=True)
        self.put_softmax(tl, seg["p1"])
        return seg

    def final(self, tl):
        a = self.a
        ls = [vL + qb for qb in range(3)]
        lfin = [f"v_mov_b32 v{vL + qb}, v{LA[qb]}" for qb in range(3)] + self.xlane(ls, "v_add_f32") + [f"v_rcp_f32 v{r}, v{r}" for r in ls]

        def h2(tl, seg):
            self.linv = tl.spread("sm", lfin, tl.pos() + 3, tl.pos() + 16, deps=[self.pvf[1]["mm"][-1]])[-1]
            return []
        fix = [Lazy(self.die_check)] + II(f"""s_add_u32 s{sSt}, s{sSt}, s{sPv}
s_add_u32 s{sSt + 1}, s{sSt}, s{sPv}
s_add_u32 s{sSt + 2}, s{sSt + 1}, s{sPv}
v_add_u32 v{aW}, {self.slot(WO0) * 32768}, v255
v_xor_b32 v{aW + 1}, 32, v{aW}""")
        self.seg_pv(tl, 31, False, hooks={2: h2}, extra=self.tail_tokens(FL), first=fix, dwin=self.tail_win(FL))
        pv = self.pvf[1::2]
        st = {}

        def oconv(tl, seg):
            for ks in range(8):
                f = pv[2 * ks + 1]
                for qb in range(3):
                    t = vE + 8 * ((ks * 3 + qb) & 1)
                    L = [f"v_accvgpr_read_b32 v{t + 4 * b + r}, a{O(2 * ks + b, qb) + r}" for b in range(2) for r in range(4)]
                    L += [f"v_cvt_pk_bf16_f32 v{QB(ks, qb) + i}, v{t + 2 * i}, v{t + 2 * i + 1}" for i in range(4)]
                    for x in L:
                        st[ks, qb] = tl.add("cv", x, f["pos"] + 6, deps=[f["m"][-1], self.ladd])
                        st[ks, qb].over = False
            self.cvdone = st[7, 2]

        slots = []
        for nc in range(7):
            order = [(hs, db) for hs in range(2) for db in range(16)]
            if a.gw:
                order = [(hs, 2 * ks + nb) for hs in range(2) for nb in range(2) for ks in range(8)]
            if nc == 0:
                order = [(hs, 2 * ks + nb) for ks in range(8) for hs in range(2) for nb in range(2)]
            frags = [self.wfrag(hs, db, lambda qb, t=2 * nc + hs, db=db: R("v", ACC(t, qb, db & 1), 4),
                                lambda qb, db=db: R("v", QB(db >> 1, qb), 4), czero=(db < 2)) for hs, db in order]
            hooks = {}
            if nc and a.gw:
                for (hs, db), f in zip(order, frags):
                    f["key"], f["size"] = (hs, db & 1), a.gw
            if nc == 0:
                def h0(tl, seg):
                    oconv(tl, seg)
                    for (hs, db), f in zip(order, frags):
                        f["needs"] = [[st[db >> 1, qb]] for qb in range(3)]
                    return []
                hooks = {0: h0}
            slots += [[f for (hs, db), f in zip(order, frags) if hs == h] for h in range(2)]
            pre, also = [], None
            if nc == 0:
                pre = [Lazy(lambda cnt: II(f"s_cmp_lg_u32 s{sFb}, 0\ns_cbranch_scc1 L_far\nL_near:"))] + II(f"v_mov_b32 v{vT}, 1\nv_lshrrev_b32 v{vT + 1}, {12 - a.fsh}, v{vLn}\nv_and_b32 v{vT + 1}, {15 << a.fsh}, v{vT + 1}")
                pre[1].deps = [self.ladd]
            if nc == 1:
                pre = II(f"""v_bfe_u32 v249, v{vLn}, 12, 4
v_lshrrev_b32 v250, 16, v{vLn}
v_mul_lo_u32 v248, s{sRb + 1}, v250
v_lshl_add_u32 v248, v249, 4, v248
v_add_u32 v248, s{sRb}, v248""")
            if nc == a.dflag:
                pre = II(f"buffer_store_dword v{vT}, v{vTd}, {srd(SRD_FLG)}, s{sMyF} offen sc1")
                also = lambda x: x.tag and x.tag[0] == "st" and a.ring[x.tag[1]] == "D"
            seg = self.segment(tl, WO0 + nc, frags, hooks=hooks, upd="W", last=(nc == 6), dwin=self.tail_win(WO0 + nc), first=pre,
                               extra=self.tail_tokens(WO0 + nc), also=also)
            if nc == a.dflag:
                dbar = seg["bar"]
        end = tl.pos()
        P0 = end - 14 * 48

        def either(text, tag=None, fl=""):
            x = I(text + fl, tag=tag)
            x.alt = text + " sc1"
            return x
        ring = [t for t in range(14) if a.ring[t] != "D"]
        eorder = list(range(14))
        if a.ring[0] == "D" and a.ring[1] != "D":
            eorder[:2] = [1, 0]
        rg, pub, ep_last, free, latest, stores = [], {}, {}, P0 + 96 + 3, [0], {}
        for t in eorder:
            step, k = self.role(t)
            add = step is not None and step > 0
            lo = max(P0 + 48 * (t + 1) + 3, free)
            ln = a.elen if add else a.elen0
            loads = []
            if add:
                r = ring.index(t)
                poll = f"buffer_load_dword v{vPoll}, off, {srd(SRD_FLG)}, s{sPrR + (step == 2)} sc1"

                def check(cnt, r=r, poll=poll):
                    self.spin(f"L_rs{r}", poll, vPoll, f"s_cmp_lt_u32 s{sPv}, {r - 2}", f"L_rb{r}")
                    return self.vwait(cnt, lambda x: f"v{vPoll}" in x.wr) + II(f"""v_readfirstlane_b32 s{sPv}, v{vPoll}
s_nop 0
s_cmp_lt_u32 s{sPv}, {r - 2}
s_cbranch_scc1 L_rs{r}
L_rb{r}:""")
                loads = [I(f"buffer_load_dwordx4 {R('v', IN(r, qb), 4)}, v{oSt}, {srd(SRD_GRP)}, s{sLo} offen offset:{qb * 1024} sc1" + " nt" * (step >= a.ntld)) for qb in range(3)]
                dep = [pub[r - 3], ep_last[ring[r - 3]], self.linv, self.cvdone]
                pl, ck = I(poll), Lazy(check)
                pl.after, ck.after = [(pub[r - 3], a.pmin)], [(pl, a.cmin)]
                early = latest[0] = max(pub[r - 3].when + a.pmin, latest[0])
                late = max(early, lo - a.lmin - a.cmin)
                tp = early + (late - early) * (a.pf if r < 11 else a.pfl)
                tc = tp + a.cmin + (late - tp) * a.cf
                latest[0] = tc + 7
                rg += [(tp, pl, [pub[r - 3]])]
                if a.hold and a.ring[t - 2] in "3D":
                    for x in stores[t - 2]:
                        x.deps.append(loads[-1] if a.hold == 2 else pl)
                if a.hold == 3 and a.ring[t - 1] in "3D":
                    for x in stores[t - 1]:
                        x.deps.append(loads[-1])
                rg += [(tc - 4 + i, x, []) for i, x in enumerate(self.col(t, sLo, 192, sSt + step - 1))]
                rg += [(tc, ck, dep)] + [(tc + 1 + 2 * qb, loads[qb], []) for qb in range(3)]
            pre = [I(f"s_add_u32 s{sSt0}, s{sD}, {k * HC}")] if step is None else self.col(t, sSt0, 192, sSt + step)
            tl.spread("st", pre, min(lo, end), min(lo + 4, end))
            L, marks = [], []
            for qb in range(3):
                b = ACC(t, qb, 0)
                if add:
                    w = Lazy(lambda cnt, r=IN(r, qb): self.vwait(cnt, lambda x: f"v{r}" in x.wr))
                    w.deps, w.vec_cost = [loads[qb]], 0
                    L.append(w)
                    for i in range(4):
                        x, u = IN(r, qb) + i, vU + (i & 1)
                        L += II(f"""v_lshlrev_b32 v{u}, 16, v{x}
v_and_b32 v{x}, 0xffff0000, v{x}
v_fma_f32 v{b + 2 * i}, v{b + 2 * i}, v{vL + qb}, v{u}
v_fma_f32 v{b + 2 * i + 1}, v{b + 2 * i + 1}, v{vL + qb}, v{x}""")
                else:
                    L += [I(f"v_mul_f32 v{b + i}, v{vL + qb}, v{b + i}") for i in range(8)]
                L += [I(f"v_cvt_pk_bf16_f32 v{b + i}, v{b + 2 * i}, v{b + 2 * i + 1}") for i in range(4)]
                marks.append(L[-1])
            tl.spread("ep", L, min(lo, end + 0.1), min(lo + ln, end + (0.9 if lo > end else 0)), deps=[slots[max(t, 1)][-1]["m"][-1], self.linv])
            for qb in range(3):
                txt = f"buffer_store_dwordx4 {R('v', ACC(t, qb, 0), 4)}, v{oSt}, {srd(SRD_GRP)}, s{sSt0} offen offset:{qb * 1024}"
                L.append(either(txt, ("st", t), " nt" * (step >= a.ntstep)) if step in (0, 1, 2) else I(txt + " " + a.stfl, tag=("st", t)))
                tl.add("st", L[-1], marks[qb].target + 0.001, deps=[marks[qb]])
            free = lo + ln
            stores[t] = L[-3:]
            ep_last[t] = marks[-1]
            if step is None and a.dflag < 7:
                dbar.deps.append(L[-1])
            if t + 4 < 14:
                for m in slots[t + 4][0]["m"]:
                    m.needs.append(L[-1])
            if step in (0, 1, 2):
                r = ring.index(t)
                fdel = a.fdel if step else a.fdel0
                when = lo + ln + fdel
                fs = either(f"buffer_store_dword v{vFlag}, v{vLn}, {srd(SRD_FLG)}, s{sMyR} offen")
                fs.when = when
                pub[r] = fs
                w = Lazy(lambda cnt, t=t: self.vwait(cnt, lambda x: x.tag == ("st", t)))
                w.after = [(L[-1], fdel)]
                for x, dep in ((I(f"v_mov_b32 v{vFlag}, {r + 1}"), []), (w, [L[-1]]), (fs, [])):
                    tl.add("fl", x, when - 1, deps=dep)
        rg += [(latest[0] + 1, I(f"buffer_load_dword v{vT + 2}, v{vT + 1}, {srd(SRD_FLG)}, 0 offen sc1"), [dbar])]
        for when, x, dep in sorted(rg, key=lambda y: y[0]):
            tl.add("rg", x, when, deps=dep)

    def reduce(self):
        a = self.a
        RB = lambda q, u: q * 16 + u * 4
        AC = lambda q, d: q * 8 + d * 4
        lds = lambda fl: [I(f"buffer_load_dwordx4 {R('a', RB(q, u), 4)}, v248, {srd(SRD_GRP)}, s{sRq + q} offen offset:{u * 256} {fl}") for q in range(4) for u in range(4)]
        pack = lambda q: [I(f"v_cvt_pk_bf16_f32 v{AC(q, 0) + k}, v{AC(q, 0) + 2 * k}, v{AC(q, 0) + 2 * k + 1}") for k in range(4)]
        mf = lambda q, u, acc, z: I(f"{MF} {R('v', AC(acc, u & 1), 4)}, {R('v', 220 + 4 * (u >> 1), 4)}, {R('a', RB(q, u), 4)}, " + ("0" if z and u < 2 else R("v", AC(acc, u & 1), 4)))

        def selectors():
            Z = II("""v_and_b32 v238, 1, v249
v_lshlrev_b32 v238, 4, v238
v_mov_b32 v239, 0x3f80
v_lshlrev_b32 v238, v238, v239
v_lshrrev_b32 v237, 1, v249""")
            for which in range(2):
                for d in range(4):
                    code = (d & 1) | (which << 1) | ((d >> 1) << 2)
                    Z += II(f"v_cmp_eq_u32 vcc, {code}, v237\nv_cndmask_b32 v{220 + 4 * which + d}, 0, v238, vcc")
            return Z
        publish = lambda n: II(f"""s_waitcnt vmcnt({n})
s_barrier
buffer_store_dword v{vFlag}, v{vTd}, {srd(SRD_FLG)}, s{sMyF} offen sc1""") + self.trace()
        poll = lambda nm, lv, go: II(f"""{nm}:
buffer_load_dword v{vT + 2}, v{vT + 1}, {srd(SRD_FLG)}, 0 offen sc1
s_waitcnt vmcnt(0)
v_cmp_gt_u32 vcc, {lv}, v{vT + 2}
s_nop 1
s_cbranch_vccz {go}
s_sleep {a.fsleep}
s_sub_u32 s{sSpin}, s{sSpin}, 1
s_cbranch_scc0 {nm}
s_endpgm""")
        L = II(f"""v_mov_b32 v{vFlag}, 2
s_cmp_lt_u32 s{sGw}, 24
s_cbranch_scc1 L_direct
v_mul_u32_u24 v231, 1792, v250
v_lshl_add_u32 v231, v249, 4, v231
v_add_u32 v233, s{sOo}, v231
v_mul_u32_u24 v229, 272, v249
v_lshl_add_u32 v229, v250, 4, v229
s_lshl_b32 s92, s{sW4}, 1
v_add_u32 v229, s92, v229
v_mul_u32_u24 v230, 272, v250
v_lshl_add_u32 v230, v249, 4, v230
v_add_u32 v230, s92, v230""") + selectors() + publish(0) + II(f"""s_cmp_ge_u32 s{sGw}, 60
s_cbranch_scc1 L_done""") + poll("L_poll", 2, "L_go") + [I("L_go:")] + (self.trace() if a.gtrace else []) + lds(a.rdfl)
        put = lambda q: pack(q) + [I(f"ds_write_b128 v229, {R('v', AC(q, 0), 4)} offset:{q * 64}")]
        for q in range(4):
            L += [I(f"s_waitcnt vmcnt({12 - 4 * q})")] + [mf(q, u, q, True) for u in range(4)]
            if q:
                L += put(q - 1)
        L += put(3) + [I(f"ds_read_b128 {R('v', 32 + 4 * q, 4)}, v230 offset:{q * 4 * 272}") for q in range(4)]
        for q in range(4):
            L += II(f"s_mov_b32 s92, {q * 4 * 1792}\ns_waitcnt lgkmcnt({3 - q})\nbuffer_store_dwordx4 {R('v', 32 + 4 * q, 4)}, v233, {srd(SRD_OUT)}, s92 offen {a.outfl}")
        L += [I("L_done:")]
        D = II(f"""L_direct:
v_mul_u32_u24 v231, 1792, v249
v_lshl_add_u32 v231, v250, 4, v231""") + selectors() + publish(0) + II(f"""v_cmp_gt_u32 vcc, 1, v{vT + 2}
s_nop 1
s_cbranch_vccnz L_dpoll
L_dgo:""") + (self.trace() if a.gtrace else []) + lds(a.ddfl)
        for q in range(4):
            D += [I(f"s_waitcnt vmcnt({12 - 4 * q})")] + [mf(q, u, 0, q == 0) for u in range(4)]
        D += pack(0) + II(f"buffer_store_dwordx4 v[0:3], v231, {srd(SRD_OUT)}, s{sOo} offen {a.outfl}\ns_branch L_done") + poll("L_dpoll", 1, "L_dgo")
        assert a.dflag < 6
        return L, D + self.ool

    def pack_muls(self, code):
        out, since, i = [], 99, 0
        while i < len(code):
            x = code[i]
            m = re.match(rf"v_mul_f32 v(\d+), s{sC}, ", x.text)
            if m and since >= 5 and int(m.group(1)) % 2 == 0 and code[i + 1].text.startswith(f"v_mul_f32 v{int(m.group(1)) + 1}, s{sC}, ") \
                    and not any(y.kind == "mfma" for y in code[i + 2:i + 5]):
                r = R("v", int(m.group(1)), 2)
                out.append(I(f"v_pk_mul_f32 {r}, {r}, s[{sC - 1}:{sC}] op_sel:[0,1] op_sel_hi:[1,1]"))
                i += 2
                since += 1
                continue
            since = 0 if x.kind == "mfma" else since + x.vec_cost
            out.append(x)
            i += 1
        return out

    def main_kernel(self):
        a = self.a
        pre = self.init()
        tl = Timeline(self.cnt)
        self.qproj(tl)
        self.first(tl)
        seg = self.seg_pv(tl, 1, False)
        u = len(self.sched)
        for v in range(2, u, 2):
            self.seg_qk(tl, v, False)
            seg = self.seg_pv(tl, v + 1, False)
        trips = (30 - u) // 4
        assert u + 4 * trips == 30
        assert self.nh == 2 * u + a.lead, self.nh
        ini = [f"s_mov_b32 s{sCnt}, {trips}"]
        tl.spread("dma", ini, seg["end"] - 6, seg["end"] - 1)
        pre += tl.run(a.look, a.pull, a.bias)
        if a.pk:
            pre = self.pack_muls(pre)
        pre += self.hop("L")
        if a.trace == 2:
            pre += [I("s_waitcnt lgkmcnt(0)")] + self.trace()
        tl = Timeline(self.cnt)
        for v in (u, u + 2):
            self.seg_qk(tl, v, True)
            self.seg_pv(tl, v + 1, True)
        tl.spread("dma", [f"s_sub_u32 s{sCnt}, s{sCnt}, 1", f"s_cmp_lg_u32 s{sCnt}, 0"], tl.pos() - 3, tl.pos() - 1)
        code = [I(".p2align 6"), I("L_loop:")] + tl.run(a.look, a.pull, a.bias) + [I("s_cbranch_scc1 L_loop")]
        loops = [dict(code=code, count=trips, step=4)]
        shift = 4 * (trips - 1)
        self.nh += 2 * shift
        self.cnt.vm = [I(x.text, tag=x.tag and (x.tag[0], x.tag[1] + shift)) for x in self.cnt.vm]
        tl = Timeline(self.cnt)
        self.seg_qk(tl, 30, False)
        self.final(tl)
        post = tl.run(a.look, a.pull, a.bias, vlate=a.vlate) + self.trace()
        post += [I("L_join:")] + self.leak("j")
        red, some = self.reduce()
        post += red
        if a.trace:
            post += self.trace() + [I("s_waitcnt vmcnt(0)")] + self.trace()
            post += II(f"""s_add_u32 s48, s64, 0xc800000
s_addc_u32 s49, s65, 0
s_mov_b32 s50, 0x80000
s_mov_b32 s51, 0x20000
s_lshl_b32 s3, s2, 11
s_lshr_b32 s4, s{sW4}, 3
s_add_u32 s3, s3, s4
s_getreg_b32 s5, hwreg(HW_REG_XCC_ID)
v_writelane_b32 v252, s5, 63
v_lshrrev_b32 v235, 10, v{vLn}
buffer_store_dword v252, v235, s[48:51], s3 offen
buffer_store_dword v253, v235, s[48:51], s3 offen offset:256""")
        if a.leak:
            post += [I("s_waitcnt vmcnt(0)")] + self.leak("e") + II(f"""{"s_mov_b32 s96, 1" if a.leak[0] == "c" else "s_sub_u32 s96, s100, s98"}
s_mul_i32 s96, s96, {a.leak.split(",")[2]}
s_min_u32 s96, s96, 0x100000
s_memrealtime s[98:99]
s_waitcnt lgkmcnt(0)
L_leak:
s_memrealtime s[100:101]
s_waitcnt lgkmcnt(0)
s_sub_u32 s100, s100, s98
s_cmp_lt_u32 s100, s96
s_cbranch_scc1 L_leak""")
        post += [I("L_end:"), I("s_endpgm")]
        blocks = [dict(code=pre)] + loops + [dict(code=post)]
        nn = fix_hazards(blocks)
        verify_waits(blocks)
        body = sum((b["code"] for b in loops), [])
        fix_hazards([dict(code=some)])
        k0 = next(i for i, x in enumerate(post) if x.text == "L_near:")
        k1 = next(i for i, x in enumerate(post) if x.text == "L_join:")
        ren = lambda t: re.sub(r"L_r([sb])(\d+)", r"L_f\1\2", t)
        far = [I("L_far:")] + [I(ren(getattr(x, "alt", x.text))) for x in post[k0 + 1:k1]] + [I("s_branch L_join")]
        k2 = next(i for i, x in enumerate(some) if x.text.startswith("L_rs"))
        far += [I(ren(x.text)) for x in some[k2:]]
        slow = []
        for k, p in enumerate(self.slow_sites):
            slow += [I(f"L_slow{k}:"), I(f"s_call_b64 s[{sRet}:{sRet + 1}], L_rescale{p}"), I(f"s_branch L_back{k}")]
        for p in sorted(set(self.slow_sites)):
            r = self.slow_routine(p)
            fix_hazards([dict(code=r)])
            slow += r
        if a.v:
            print("nops", nn, "trips", trips, "stamps", sum(x.text.startswith("s_memtime") for x in pre + post), "body", stats(body))
            for nm, code in (("pre", pre), ("post", post)):
                segs, cur = [], []
                for x in code:
                    if x.kind == "bar":
                        segs.append(cur)
                        cur = []
                    cur.append(x)
                segs.append(cur)
                print(nm, "est cycles per segment:", [stats(s)[0] for s in segs])
        if a.pad:
            pre += [I("s_branch L_padded")] + [I("s_nop 0")] * (a.pad // 4) + [I("L_padded:")]
        if a.odrop:
            k0 = next(i for i, x in enumerate(post) if x.kind == "bar" and x.tag and x.tag[1] == WO0)
            k1 = next(i for i, x in enumerate(post) if x.text.startswith("L_join"))
            post = post[:k0] + [x for x in post[k0:k1] if not any(x.text.startswith(d) for d in a.odrop.split(","))] + post[k1:]
        if a.ldrop:
            body = [x for x in body if not any(x.text.startswith(d) for d in a.ldrop.split(","))]
        return self.place_pads(pre + body + post + some + [I("L_last:")] + far + slow)


def text(code, drop=()):
    code = [x for x in code if not any(x.text.startswith(d) for d in drop)]
    return "".join(("" if x.kind == "label" else "    ") + x.text.rstrip() + "\n" for x in code)


HEADER = """;
; LDS holds five 32-KB slots filled by LDS-DMA with the bank swizzle on the source addresses.
;   1. Q^T = Wq^T x^T, scaled by log2(e)/16 and rounded to bf16 (stays in VGPRs as B operands).
;   2. Flash attention over pairs of 32-key tiles, a {K, K} slot then a {V, V} slot. The row reference
;      starts as the true max of tile 0 plus 36 and enters QK as the C operand; a pair with a probability of 2
;      or more branches to L_rescale0, which moves it to the true running max. Row sums come from an MFMA.
; Flags live in d_ws, are cleared at entry, and are trusted only after the group's d_debug counter is full.
; L_pad*: first line of each 4-KB code page, visited early with EXEC = 0 to warm the instruction cache.
"""


def build(a):
    g = Gen(a)
    nm = NAME + "_kernel"
    s = "".join(l for l in open(f"cdna_kernels/{NAME}.s.ref") if l.startswith(";   offset") or l.startswith("; Kernarg"))
    s += "; @launch grid=(256,1,1) block=(256,1,1) lds=163840\n"
    s += HEADER
    s += '.amdgcn_target "amdgcn-amd-amdhsa--gfx950"\n.text\n'
    s += f".globl {nm}\n.p2align 12\n.p2align 8\n.type {nm},@function\n{nm}:\n" + text(g.main_kernel(), a.drop.split(",") if a.drop else ())
    s += f""".section .rodata,"a"
.p2align 6
.amdhsa_kernel {nm}
  .amdhsa_next_free_vgpr 512
  .amdhsa_next_free_sgpr 102
  .amdhsa_accum_offset 256
  .amdhsa_group_segment_fixed_size 0
  .amdhsa_kernarg_size 104
  .amdhsa_user_sgpr_count 2
  .amdhsa_user_sgpr_kernarg_segment_ptr 1
  .amdhsa_system_sgpr_workgroup_id_x 1
.end_amdhsa_kernel
"""
    return s


def parser():
    ap = argparse.ArgumentParser()
    ap.add_argument("-o", default="k.s")
    ap.add_argument("-v", action="store_true")
    for k, v in dict(X=4, Y=2, cut=7, look=10, nq=5, tb=4, t0=2, lead=3, wofast=4, wotouch=30,
                     grp=16, ctouch=1, trace=0, itrace=0, i0=2, flagstride=4352, pollsleep=2, hold=3, dip=-1, dipn=14, pre=1, fsh=5, minlead=0, xb=15, jb=10, wb=12, wc=13, eb=9, smlag=4, rlead=16, both=5, gtrace=0, fsleep=2, ntld=4, ntstep=3, joint=1, early=0, pk=1, kmaj=0, gk=8, gv=2, gf=2, gw=4, krot=1, lastbar=5, pad=0, map=0, sprint=0, slead=3, ltouch=0, dflag=4, elen=47, elen0=28, fdel=16, fdel0=34, lmin=30, forcefb=0, vlate=3, pmin=14, cmin=18).items():
        ap.add_argument("--" + k, type=int, default=v)
    for k, v in dict(tref=36.0, dmaspan=0.95, pull=3.0, bias=0.0, pf=1.0, pfl=0.3, cf=0.0, dmalo=0.14, slo=0.0, vend=0.4, vbeg=0.26, wend=0.3, wbeg=0.16, pair=1.0).items():
        ap.add_argument("--" + k, type=float, default=v)
    for k, v in dict(kvfl="nt", wfl="", stfl="sc1", rdfl="sc1", ddfl="sc1", outfl="nt", drop="", ldrop="", odrop="", prof="", tfl="", leak="", wo29="", hops="3,L", hopn="5,16", ring="DD000111222333", wos="O|...PP|PP,,,RR||PP|P", sched="2,2",
                     qs="WW||T||......WW|WWT||...W|WW|WT||...W|WW|WH|H||H").items():
        ap.add_argument("--" + k, default=v)
    return ap


if __name__ == "__main__":
    a = parser().parse_args()
    txt = build(a)
    open(a.o, "w").write(txt)
```

```python
import argparse, re, struct
from asmlib import *

NAME = "concat_heads__mha_block_cached__gqa_block_cached__near_ridge"
f32 = lambda x: hex(struct.unpack("<I", struct.pack("<f", x))[0])

SRD_X, SRD_WQ, SRD_K, SRD_V, SRD_WO = 8, 12, 16, 20, 24
SRD_GRP, SRD_FLG, SRD_DBG, SRD_OUT = 68, 72, 80, 84
sMyR, sPrR, sMyF, sIds, sTo = 28, 60, 30, 31, 44
sPc, sSt, sD, sFb, sLo, sPv, sXcc, sSpin = 52, 56, 63, 76, 78, 79, 97, 67
sW4, sK, sV, sT0, sT1, sCur, sPrev, sDelta, sPos, sNeg, sCnt, sC = 32, 33, 34, 35, 36, 37, 38, 39, 40, 41, 42, 43
sSt0, sT2, sRet, sGw, sX2 = 4, 5, 6, 66, 29
sRq, sRb, sOo, sW8, sJ = 88, 46, 62, 37, 38
aK, aV, oK, oV, oWq, oWo, oSt = 192, 196, 204, 206, 208, 210, 212
vL, vT, aX, vE, vX, vTmp, vNm = 213, 216, 219, 220, 228, 232, 240
FRAG0 = 192
vCp = 254
aW = 194
LA, vOne = (168, 172, 176), 228
aQ = 236
aU = (236, 237, 238, 239)
vTw = 232
MF = "v_mfma_f32_16x16x32_bf16"
srd = lambda s: f"s[{s}:{s + 3}]"
S = lambda p, j, qb: 24 + p * 48 + (j * 3 + qb) * 4
P = lambda p, qb: 120 + p * 12 + qb * 4
O = lambda db, qb: (db * 3 + qb) * 4
QA = lambda db, qb: ((db >> 1) * 3 + qb) * 8 + (db & 1) * 4
QB = lambda ks, qb: 48 * (ks >> 1) + 12 * (ks & 1) + 4 * qb
XB = lambda ks, qb: (ks & 3) * 12 + qb * 4
ACC = lambda t, qb, nb: 24 + 48 * (t & 3) + qb * 8 + nb * 4
IN = lambda r, qb: (220, 232, 196)[r % 3] + 4 * qb
vLn, vTd, vPoll, vFlag, vU = 208, 209, 244, 245, 246
NW, F0, FL, WO0, NEND = 14, 14, 45, 46, 52
HC = 12288
DSTR, QSTR, FBASE, RBASE, GSTR = 7 * 4096, 37 * 4096, 0x70000, 0x110000, 865 * 4096
FLAGOFF = 16 * GSTR


def II(txt):
    return [I(x) for x in txt.strip().split("\n")]


class Gen:
    def __init__(self, a):
        self.a = a
        self.cnt = Counters()
        self.fc = 0
        self.buf_last = {}
        self.tail = []
        self.slow_sites = []
        self.X, self.Y = a.X, a.Y
        self.nh = 0
        self.lastdma = None
        self.sched = [int(x) for x in a.sched.split(",")]
        self.qs = a.qs.split("|")
        assert len(self.qs) == 3 + len(a.qseg)
        self.nw = self.nx = self.nt = 0
        self.ool = []
        self.wdone = set()
        self.nr = self.nhop = self.flip = 0
        self.wos = a.wos.split("|")

    def slot(self, n):
        nq = self.a.nq
        if n >= WO0:
            return (4, 0, 2, 1, 3)[(n - WO0) % 5]
        return 5 - nq + (n - NW) % nq if n < NW else (0, 2, 1, 3)[(n - F0) % 4]

    def ndma(self, n):
        return 7 if n < NW else 8

    def dma(self, n, voff, s, soff, imm, fl):
        fl = (fl + " ") if fl else ""
        return I(f"buffer_load_dwordx4 v{voff}, {srd(s)}, s{soff} offen offset:{imm} {fl}lds", tag=("fill", n))

    def half_kv(self, n, kind):
        s, vo, so = (SRD_K, oK, sK) if kind == "K" else (SRD_V, oV, sV)
        a = self.a
        used = {a.eb, a.xb, a.jb, a.wb, a.wc}
        assert len(used) == 5 and a.xb >= 11 and a.jb >= 10
        inc = min(b for b in range(9, 19) if b not in used)
        hole = sum(1 << b for b in used if b > inc)
        pre = [] if a.jb == 10 else [I(f"s_add_u32 s{sJ}, s{so}, {(1 << a.jb) - 1024}")]
        L = [self.dma(n, vo + x, s, sJ if j and pre else so, x * 2048 + j * 1024, a.kvfl) for j in range(2) for x in range(2)]
        L += [I(f"s_add_u32 s{so}, s{so}, {hex((1 << inc) + hole)}")] + ([I(f"s_andn2_b32 s{so}, s{so}, {hex(hole)}")] if hole else [])
        return pre, L

    def half_w(self, n, s, vo, offs):
        pre = [I(f"s_mov_b32 s{sT0}, {offs[0]}"), I(f"s_mov_b32 s{sT1}, {offs[1]}")]
        return pre, [self.dma(n, vo + x, s, (sT0, sT1)[j], x * 2048 + j * 1024, self.a.wfl) for j in range(2) for x in range(2)]

    def role(self, t):
        c = self.a.ring[t]
        k = self.a.ring[:t].count(c)
        return (None, k) if c == "D" else (int(c), (k + self.a.krot) % 3)

    def col(self, t, dst, scale, base):
        st, k = self.role(t)
        if st is None:
            c = (768 + 64 * k) * scale
            return [I(f"s_mov_b32 s{dst}, {c}" if base is None else f"s_add_u32 s{dst}, s{base}, {c}")]
        L = [I(f"s_mul_i32 s{dst}, s{sPc + st}, {(128 if k else 64) * scale}"), I(f"s_add_u32 s{dst}, s{dst}, {(64 * (k - 1) if k else 512) * scale}")]
        return L + ([] if base is None else [I(f"s_add_u32 s{dst}, s{dst}, s{base}")])

    def wo_items(self, n, count):
        L = []
        for _ in range(count):
            todo = [t for t in range(14) if t not in self.wdone]
            if not todo or WO0 + (todo[0] >> 1) - 4 > n:
                break
            st, k = self.role(todo[0])
            want = (None, k ^ 1) if st is None else (st ^ 1, 0) if k == 0 else (st, 3 - k)
            ts = [todo[0]] + [t for t in todo[1:] if self.role(t) == want and WO0 + (t >> 1) - 4 <= n]
            regs = [(sT0, sT1), (92, 93)]
            for t, r in zip(ts, regs):
                L += self.col(t, r[0], 1, None) + [I(f"s_add_u32 s{r[1]}, s{r[0]}, {16 * 896 - 1024}")]
            for j in range(2):
                for x in range(2):
                    for t, r in zip(ts, regs):
                        m = WO0 + (t >> 1)
                        L += [I(f"s_add_u32 m0, s{sW4}, {self.slot(m) * 32768 + (t & 1) * 16384}"), self.dma(m, oWo + x, SRD_WO, r[j], x * 2048 + j * 1024, self.a.wfl)]
            self.wdone.update(ts)
            if self.a.v:
                print('seg', n - WO0, 'wo', ts)
        return L

    def fill_halves(self, n):
        H = []
        for hs in range(2):
            if n < NW and hs == 0:
                pre = [I(f"s_mov_b32 s{sT2}, {n * 64}")]
                d = [self.dma(n, vX + qb, SRD_X, sT2, qb * 1024, self.a.wfl) for qb in range(3)]
            elif n < NW:
                pre, d = self.half_w(n, SRD_WQ, oWq, [n * 262144 + j * (32768 - 1024) for j in range(2)])
            else:
                pre, d = self.half_kv(n, "KV"[(n - F0) & 1])
            m0 = f"s_add_u32 m0, s{sW4}, {self.slot(n) * 32768 + hs * 16384}"
            if n < NW and hs:
                m0 = f"s_add_u32 m0, s{sW8}, {self.slot(n) * 32768 + 16320}"
            H.append((m0, pre, d))
        return H

    def fill(self, n):
        L = []
        for m0, pre, d in self.fill_halves(n):
            L += [I(m0)] + pre + d
        return L

    def halves(self, n, upto):
        L = []
        while self.nh < min(upto, 64):
            h = self.nh
            m = F0 + (h >> 1)
            prev = m - 4 if m - 4 >= F0 else max(k for k in range(NW) if self.slot(k) == self.slot(m))
            assert prev < n, (n, h)
            m0, pre, d = self.fill_halves(m)[h & 1]
            L += [I(m0)] + pre + d
            self.nh += 1
        return L

    def at(self, n, reg, hs):
        sl = self.slot(n)
        return reg, (sl & 1) * 32768 + hs * 16384

    def kfrag(self, n, hs, p, j, ks, czero=False):
        r, o = self.at(n, aK + (ks & 3), hs)
        rd = [lambda b: f"ds_read_b128 {R('a', b, 4)}, v{r} offset:{o + j * 1024 + (ks >> 2) * 256}"]
        init = None if ks else (lambda qb: "0" if czero else R("v", vNm + qb * 4, 4))
        return dict(rd=rd, dst=lambda qb: R("v", S(p, j, qb), 4), bop=lambda qb: R("v", QB(ks, qb), 4), init=init, key=("k", j), size=self.a.gk)

    def tfrag(self, hs, db, dst, bop, czero=False):
        rd = [lambda b, j=j: f"ds_read_b64_tr_b16 {R('a', b + 2 * j, 2)}, v{aV + (db & 7)} offset:{hs * 16384 + j * 1024 + (db >> 3) * 256}" for j in range(2)]
        return dict(rd=rd, dst=dst, bop=bop, init=(lambda qb: "0") if czero else None, key=bop(0), size=self.a.gv)

    def wfrag(self, hs, db, dst, bop, czero=False):
        f = self.tfrag(hs, db, dst, bop, czero)
        f["rd"] = [lambda b, j=j: f"ds_read_b64_tr_b16 {R('a', b + 2 * j, 2)}, v{aW + (db & 1)} offset:{hs * 16384 + (db >> 1) * 2048 + j * 1024}" for j in range(2)]
        return f

    def ufrag(self, k, db):
        f = self.tfrag(0, db, lambda qb: R("v", QA(db, qb), 4), lambda qb: R("a", XB(k, qb), 4), k == 0)
        r, o = aQ + 5 * (self.slot(k) >> 1), (self.slot(k) & 1) * 32768
        f["rd"] = [lambda b, j=j: f"ds_read_b64_tr_b16 {R('a', b + 2 * j, 2)}, v{r + (db >> 1 & 3)} offset:{o + (db >> 3) * 256 + j * 1024 + (db & 1) * 8}" for j in range(2)]
        if db == 0:
            f["pre"] = [f"ds_read_b128 {R('a', XB(k, qb), 4)}, v{r + 4} offset:{o + qb * 1024}" for qb in range(3)]
        return f

    def vfrag(self, n, hs, p, db):
        f = self.tfrag(hs, db, lambda qb: R("a", O(db, qb), 4), lambda qb: R("v", P(p, qb), 4))
        r, o = self.at(n, aV + (db & 7), hs)
        f["rd"] = [lambda b, j=j: f"ds_read_b64_tr_b16 {R('a', b + 2 * j, 2)}, v{r} offset:{o + j * 1024 + (db >> 3) * 256}" for j in range(2)]
        return f

    def trace(self):
        if not self.a.trace:
            return []
        return II("""s_memrealtime s[98:99]
s_memtime s[100:101]
s_lshl_b64 exec, 1, s96
s_add_u32 s96, s96, 1
s_waitcnt lgkmcnt(0)
v_mov_b32 v252, s98
v_mov_b32 v253, s100
s_mov_b64 exec, -1""")

    def leak(self, mark):
        m = self.a.leak.split(",")
        L = []
        for k in range(2):
            if len(m) == 3 and m[k] == str(mark):
                L += II(f"s_waitcnt lgkmcnt(0)\ns_memrealtime s[{98 + 2 * k}:{99 + 2 * k}]\ns_waitcnt lgkmcnt(0)")
        return L

    def hop(self, n):
        if str(n) not in self.a.hops.split(","):
            return []
        k = self.nhop
        self.nhop += 1
        L = ["s_mov_b64 exec, 0"]
        for w in range(3):
            L += [f"s_cmp_eq_u32 s3, {w}", f"s_cbranch_scc1 L_hop{k}_{w}"]
        return [I(x) for x in L + [f"s_branch L_hop{k}_3", f"L_hopped{k}:", "s_mov_b64 exec, -1"]]

    def place_pads(self, code):
        k0 = next(i for i, x in enumerate(code) if x.text == "L_page0:")
        k1 = next(i for i, x in enumerate(code) if x.text == "L_last:")
        stubs = "".join(f"L_hop{k}_{w}:\n" for k in range(self.nhop) for w in range(4))
        sz = sizes(code, '.amdgcn_target "amdgcn-amd-amdhsa--gfx950"\n.text\n' + stubs)
        at, page, pads, src = 0, 1, [], {}
        i = k0
        while i < k1:
            x = code[i]
            if x.text.startswith("L_hopped"):
                src[int(x.text[8:-1])] = len(pads)
            if x.text.startswith(".p2align"):
                al = 1 << int(x.text.split()[1])
                at = -(-at // al) * al
            if at >= page * 4096:
                good = code[i - 1].kind == "mfma" and not x.scalar
                if good or at + sz[i] > page * 4096 + 48:
                    pads.append(i)
                    at += 4
                    page += 1
            at += sz[i]
            i += 1
        counts = [int(c) for c in self.a.hopn.split(",")]
        label, target, nxt = {}, {}, 0
        for k in range(self.nhop):
            nxt = max(nxt, src[k])
            mine = list(range(nxt, min(nxt + counts[k], len(pads))))
            nxt += len(mine)
            for w in range(4):
                ch = mine[w::4]
                if not ch:
                    label.setdefault(("h", k), []).append(f"L_hop{k}_{w}:")
                    continue
                label.setdefault(ch[0], []).append(f"L_hop{k}_{w}:")
                for p, q in zip(ch, ch[1:] + [None]):
                    target[p] = f"L_pad{q}" if q is not None else f"L_hopped{k}"
        out = []
        for i, x in enumerate(code):
            if x.text.startswith("L_hopped"):
                out += [I(l) for l in label.get(("h", int(x.text[8:-1])), [])]
            if i in pads:
                p = pads.index(i)
                out += [I(l) for l in label.get(p, [])] + [I(f"L_pad{p}:"), I(f"s_cbranch_execz {target[p]}" if p in target else "s_nop 0")]
            out.append(x)
        if self.a.v:
            print("pages", len(pads), "warmed", len(target), "sources", src)
        return out

    def put_group(self, tl, fs, needs=()):
        qs = [2, 1, 0] if self.flip else [0, 1, 2]
        self.flip ^= 1
        for x in fs:
            x["m"] = []
        for i, q in enumerate(qs):
            init = {x["dst"](q): x["init"](q) for x in fs if x["init"]}
            for x in (fs[::-1] if i & 1 else fs):
                d = x["dst"](q)
                x["pos"] = tl.pos() - 2
                x.setdefault("first", tl.pos())
                x["m"].append(tl.mfma(f"{MF} {d}, {R('a', x['buf'], 4)}, {x['bop'](q)}, {init.pop(d, d)}",
                                      needs=list(x["ri"]) + list(needs) + list(x.get("needs", [[], [], []])[q])))
        for x in fs:
            self.buf_last[x["buf"]] = x["m"][-1]
            if "more" in x:
                x["mm"] = [tl.mfma(m, needs=x["mneeds"]) for m in x["more"]]

    def groups(self, fs, cuts=()):
        out = []
        for i, f in enumerate(fs):
            if out and i not in cuts and f["key"] == out[-1][1][0]["key"] and len(out[-1][1]) < f["size"]:
                out[-1][1].append(f)
            else:
                out.append((i, [f]))
        return out

    def segment(self, tl, n, frags, hooks=None, dyn=False, upd="", last=False, fills=(), upto=0, extra=(), dwin=None, also=None, first=(), upto_fill=None, notail=False, pace=None):
        hooks = hooks or {}
        X, Y = self.X, self.Y
        p0 = tl.pos()
        st = [] if ((dyn and self.a.trace == 2) or (self.a.trace == 3 and n != WO0)
                    or (self.a.trace == 4 and n not in (F0, WO0)) or (self.a.trace == 6 and n < FL - 1) or (self.a.trace == 7 and (n <= F0 or n > FL or n % 2 == 0))
                    or (self.a.trace == 5 and (dyn or n % 2 or n > F0 + 2) and n not in (F0 + 1, FL, WO0))) else self.trace()

        st = st + ([] if dyn else self.leak(n))
        nhi = NEND if n == WO0 + self.a.lastbar else upto_fill or n

        def barrier(cnt):
            if n > WO0 + self.a.lastbar:
                return st and [I("s_waitcnt lgkmcnt(0)")] + st
            v = 4 * (self.a.lead - 2) if dyn else cnt.need(cnt.vm, lambda x: x.tag and (x.tag[0] == "fill" and n <= x.tag[1] <= nhi or (also and also(x))))
            w = "s_waitcnt " + (f"vmcnt({v}) " if v is not None else "") + "lgkmcnt(0)"
            dip = [I(f"s_sleep {self.a.dipn}")] if n == self.a.dip else []
            return self.hop(n) + dip + [I(w), I("s_barrier", tag=("bar", n, self.ndma(n), nhi))] + st
        bar = tl.add("rd", Lazy(barrier), p0, deps=[self.lastdma] if self.lastdma else [])
        tail, self.tail = self.tail, []
        base = p0 + 3 * (len(tail) - X) - (self.a.rlead if notail else 0)
        nf = len(frags)
        for i, f in enumerate(frags):
            f["buf"] = FRAG0 + 4 * (self.fc % 16)
            self.fc += 1
            f["ri"] = [I(x) for x in f.get("pre", [])] + [I(r(f["buf"])) for r in f["rd"]]
        for _, g in self.groups(tail):
            self.put_group(tl, g)
        seg = dict(p0=p0, p1=tl.pos(), bar=bar, tail=tail, end=p0 + 3 * (len(tail) + nf + 2 * sum("more" in f for f in frags) - (0 if last or notail else X)))
        if n >= WO0 + self.a.lastbar or notail:
            Y = 1
        span = 3.0 * (nf - Y) / nf
        for i, f in enumerate(frags):
            for k, r in enumerate(f["ri"]):
                tl.add("rd", r, base + span * (i + k / len(f["ri"])))
        for f in frags:
            if f.get("late"):
                for r in f["ri"][:3]:
                    tl.streams["rd"].remove(r)
                    tl.add("rx", r, seg["p1"], deps=[bar, tail[-1]["m"][-1]])
        nhead = nf if last or notail else nf - X
        for i, g in self.groups(frags, set(hooks) | {nhead}):
            for f in g:
                if self.buf_last.get(f["buf"]) is not None:
                    f["ri"][0].deps.append(self.buf_last[f["buf"]])
            if i < nhead:
                self.put_group(tl, g, hooks[i](tl, seg) if i in hooks else [])
            else:
                self.tail += g
        nxt = 1e9
        for i, f in reversed(list(enumerate(frags))):
            use = f.get("first", seg["end"] + i - nhead)
            for r in reversed(f["ri"]):
                if r.stream == "rd" and self.a.minlead:
                    nxt = r.target = min(r.target, use - self.a.minlead, nxt - 1)
        if not last:
            regs = ([aX] if "X" in upd else []) + ([aK + i for i in range(4)] if "K" in upd else []) + ([aV + i for i in range(8)] if "V" in upd else []) + ([aW, aW + 1] if "W" in upd else []) + (list(aU) if "U" in upd else [])
            dl = (self.slot((upto_fill or n) + 1) - self.slot(n)) * 32768
            ups = [I(f"v_add_u32 v{r}, {hex(dl & 0xffffffff)}, v{r}") for r in regs]
        if first:
            tl.spread("dma", first, p0 + 1, p0 + 1 + 1.5 * len(first), deps=[bar])
            self.lastdma = first[-1]
        fl = []
        for m in fills:
            fl += self.fill(m)
        fl += self.halves(n, upto) + list(extra)
        if fl:
            lo, hi = dwin or (self.a.dmalo, self.a.dmaspan)
            tl.spread("dma", fl, p0 + 1 + (seg["end"] - p0) * lo, p0 + 1 + (seg["end"] - p0) * hi, deps=[bar])
            self.lastdma = fl[-1]
            dm = [x for x in fl if x.kind == "vmem"]
            if pace:
                b, e, z = pace[0] * 96, pace[1] * 96, seg["end"] - p0 - 4
                ps = [b + (e - b) * i / 3 for i in range(4)] + [e + (z - e) * (i + 1) / (len(dm) - 4) for i in range(len(dm) - 4)]
                if self.a.pair and len(dm) == 8:
                    ps = [ps[i + 1] - self.a.pair if i % 2 == 0 else ps[i] for i in range(8)]
                nxt = seg["end"] - 2
                for x in reversed(fl):
                    if x.kind == "vmem":
                        nxt = p0 + ps[dm.index(x)]
                        x.target = nxt
                    else:
                        nxt = x.target = max(p0 + 1, min(nxt, seg["end"] - 2) - 1.5)
        if not last:
            tl.spread("rd", ups, seg["end"] - 3 * Y, seg["end"] - 1)
        return seg

    def softmax(self, blocks=None):
        blocks = blocks or [(p, j, qb) for p in range(2) for j in range(2) for qb in range(3)]
        L, post = [], []
        for bi, (p, j, qb) in enumerate(blocks):
            e = vE + 4 * (bi & 1)
            for r in range(4):
                L.append(I(f"v_exp_f32 v{e + r}, v{S(p, j, qb) + r}"))
                L[-1].blk = None if r else (p, j, qb)
                L += post[:2] if r == 0 else post[2:] if r == 2 else []
            d = P(p, qb) + 2 * j
            post = II(f"v_cvt_pk_bf16_f32 v{d}, v{e}, v{e + 1}\nv_cvt_pk_bf16_f32 v{d + 1}, v{e + 2}, v{e + 3}\n"
                      f"v_or3_b32 v{vT}, v{d}, v{d + 1}, " + (f"v{vT}" if bi else "0"))
        return L + post + II(f"v_and_b32 v{vTmp}, 0x40004000, v{vT}\nv_cmp_ne_u32 vcc, 0, v{vTmp}")

    def put_softmax(self, tl, p0, floor=0):
        done = {}
        for k in range(p0, tl.pos()):
            done[tl.mf[k].wr[0]] = k
        order = sorted(((p, j, qb) for p in range(2) for j in range(2) for qb in range(3)), key=lambda b: done[f"v{S(*b)}"])
        t = floor
        for x in self.softmax(order):
            dep = []
            if getattr(x, "blk", None):
                k = done[f"v{S(*x.blk)}"]
                t, dep = max(t, min(k + 1 + self.a.smlag, tl.pos())), [tl.mf[k]]
            tl.add("sm", x, t, deps=dep)

    def check(self, tl, p, after, target):
        k = len(self.slow_sites)
        self.slow_sites.append(p)
        br = tl.add("sm", Lazy(lambda cnt: [I(f"s_cbranch_vccnz L_slow{k}"), I(f"L_back{k}:")]), target, deps=after)
        return br

    def xlane(self, regs, op):
        L = []
        for sw in ("v_permlane16_swap_b32", "v_permlane32_swap_b32"):
            L += [f"v_mov_b32 v{vTmp + 4 + i}, v{r}" for i, r in enumerate(regs)]
            L += [f"{sw} v{r}, v{vTmp + 4 + i}" for i, r in enumerate(regs)]
            L += [f"{op} v{r}, v{r}, v{vTmp + 4 + i}" for i, r in enumerate(regs)]
        return L

    def tilemax(self, ps):
        L, mx = [], [vTmp + 1 + qb for qb in range(3)]
        for step in range(4 * len(ps)):
            for qb in range(3):
                v = [S(p, j, qb) + r for p in ps for j in range(2) for r in range(4)]
                if step == 0:
                    L.append(f"v_max_f32 v{mx[qb]}, v{v[0]}, v{v[1]}")
                else:
                    L.append(f"v_max3_f32 v{mx[qb]}, v{mx[qb]}, v{v[2 * step]}, v{v[2 * step + 1]}")
        return L + self.xlane(mx, "v_max_f32"), mx

    def slow_routine(self, p):
        L = [f"L_rescale{p}:", "s_nop 15"]
        m, mx = self.tilemax((0, 1))
        L += m
        L += [f"v_add_f32 v{r}, {f32(self.a.tref)}, v{r}" for r in mx]
        L += [f"v_max_f32 v{r}, 0, v{r}" for r in mx]
        for qb in range(3):
            L += [f"v_sub_f32 v{vNm + qb * 4 + r}, v{vNm + qb * 4 + r}, v{mx[qb]}" for r in range(4)]
            for pp in range(2):
                for j in range(2):
                    L += [f"v_sub_f32 v{S(pp, j, qb) + r}, v{S(pp, j, qb) + r}, v{mx[qb]}" for r in range(4)]
        L += [f"v_exp_f32_e64 v{r}, -v{r}" for r in mx]
        L += [f"v_mul_f32 v{LA[qb]}, v{LA[qb]}, v{mx[qb]}" for qb in range(3)]
        for db in range(16):
            for qb in range(3):
                L += [f"v_accvgpr_read_b32 v{vE + r}, a{O(db, qb) + r}" for r in range(4)]
                L += [f"v_mul_f32 v{vE + r}, v{vE + r}, v{mx[qb]}" for r in range(4)]
                L += [f"v_accvgpr_write_b32 a{O(db, qb) + r}, v{vE + r}" for r in range(4)]
        L = [I(x) for x in L] + self.softmax()[:-2]
        return L + [I("s_nop 3"), I(f"s_setpc_b64 s[{sRet}:{sRet + 1}]")]

    def upto(self, u):
        return self.nh + self.sched[u] if u < len(self.sched) else 2 * u + 2 + self.a.lead

    def paced(self, u, b, e):
        return dict(pace=(b, e)) if self.nh <= 2 * u + self.a.lead else dict(dwin=(0.05, 0.9))

    def seg_qk(self, tl, u, dyn):
        a = self.a
        frags = [self.kfrag(F0 + u, p, p, j, ks) for p in range(2) for j in range(2) for ks in range(8)]
        extra = []
        if u == 30:
            extra = [Lazy(self.dbg_check)] + II(f"""buffer_load_dword v218, v214, {srd(SRD_FLG)}, s{sIds} offen sc1""") + self.tail_tokens(F0 + u)
        seg = self.segment(tl, F0 + u, frags, dyn=dyn, upto=self.upto(u), extra=extra, notail=True, **self.paced(u, a.vbeg, a.vend))
        self.put_softmax(tl, seg["p1"])
        return seg

    def seg_pv(self, tl, u, dyn, hooks=None, **kw):
        a = self.a
        fr = [self.vfrag(F0 + u, h, h, db) for db in range(16) for h in range(2)]
        for i, f in enumerate(fr):
            f["key"], f["size"] = i >> 1, a.gf
            if u == 1 and not i & 1 and i < 32 - self.X:
                f["init"] = lambda qb: "0"
        cut = 0
        if u == 1 and a.split:
            nh = 32 - self.X
            fr = fr[0:nh:2] + fr[1:nh:2] + fr[nh:]
            cut = nh // 2
            for i, f in enumerate(fr[:nh]):
                f["key"], f["size"] = ("s", i // cut), a.gv
        fr[cut + 1]["more"] = [f"{MF} {R('v', LA[qb], 4)}, {R('v', vOne, 4)}, {R('v', P(p ^ (qb & 1), qb), 4)}, " + ("0" if u == 1 and p == 0 else R("v", LA[qb], 4))
                               for qb in range(3) for p in range(2)]
        fr[cut + 1]["mneeds"] = [self.ones]

        def hc(tl, seg):
            self.ladd = self.check(tl, 0, [fr[cut - 1]["m"][-1]] if cut else [], tl.pos())
            return [self.ladd]

        def h0(tl, seg):
            sm = tl.streams["sm"]
            if cut:
                k = max(i for i, x in enumerate(sm) if isinstance(x, I) and x.mn.startswith("v_cvt") and P(0, 0) <= int(x.wr[0][1:]) < P(1, 0))
                seg["bar"].deps.append(sm[k - a.both])
                return [fr[self.X + 1]["ri"][-1], sm[k]]
            seg["bar"].deps.append(sm[-a.both])
            return [fr[self.X + 1]["ri"][-1]] + hc(tl, seg)
        if cut:
            hooks = {cut: hc}
        if u == 1:
            kw["extra"] = II(f"""buffer_load_dword v239, off, {srd(SRD_DBG)}, 0 sc1
v_mbcnt_lo_u32_b32 v213, -1, 0
v_mbcnt_hi_u32_b32 v213, -1, v213
v_lshlrev_b32 v{vLn}, 12, v213
v_lshlrev_b32 v{vTd}, 12, v{oSt}
v_and_b32 v214, 3, v213
v_lshlrev_b32 v214, {a.fsh}, v214""")
            kw["first"], kw["extra"] = kw["extra"], []
        if u < 31:
            kw.update(upto=self.upto(u), **self.paced(u, a.wbeg, a.wend))
        self.pvf = fr
        return self.segment(tl, F0 + u, fr, hooks={**(hooks or {}), 0: h0}, dyn=dyn, **kw)

    def tail_win(self, n):
        t = self.wos[n - FL + 1] if n - FL + 1 < len(self.wos) else ""
        return 0.1 * t.count("."), 0.92 - 0.1 * t.count(",")

    def tail_tokens(self, n, toks=None):
        L = []
        if toks is None:
            toks = self.wos[n - FL + 1] if n - FL + 1 < len(self.wos) else ""
        for c in toks:
            if c == "P":
                L += self.wo_items(n, 1)
            elif c == "O":
                L += II(f"buffer_load_dword v{aX}, v215, {srd(SRD_WO)}, s{sTo} offen")
            elif c == "R":
                L += II(f"buffer_load_dword v{192 + self.nr}, v{vCp}, {srd(SRD_GRP)}, s{sTo + 1} offen\ns_add_u32 s{sTo + 1}, s{sTo + 1}, {36 * 128}")
                self.nr += 1
        return L

    def vwait(self, cnt, pred):
        v = cnt.need(cnt.vm, pred)
        return [] if v is None else [I(f"s_waitcnt vmcnt({min(v, 63)})")]

    def spin(self, nm, load, reg, test, back):
        self.ool += II(f"""{nm}:
s_sleep {self.a.pollsleep}
{load}
s_waitcnt vmcnt(0)
v_readfirstlane_b32 s{sPv}, v{reg}
s_nop 1
{test}
s_cbranch_scc0 {back}
s_sub_u32 s{sSpin}, s{sSpin}, 1
s_cbranch_scc0 {nm}
s_endpgm""")

    def dbg_check(self, cnt):
        self.spin("L_dbg", f"buffer_load_dword v239, off, {srd(SRD_DBG)}, 0 sc1", 239, f"s_and_b32 s{sPv}, s{sPv}, 15", "L_dbgok")
        return self.vwait(cnt, lambda x: "v239" in x.wr) + II(f"""v_readfirstlane_b32 s{sPv}, v239
s_nop 1
s_and_b32 s{sPv}, s{sPv}, 15
s_cbranch_scc1 L_dbg
L_dbgok:""")

    def die_check(self, cnt):
        return self.vwait(cnt, lambda x: "v218" in x.wr) + II(f"""v_cmp_ne_u32 s[{sFb}:{sFb + 1}], s{sXcc}, v218
s_nop 1
s_cmp_lg_u64 s[{sFb}:{sFb + 1}], {-1 if self.a.forcefb else 0}
s_cselect_b32 s{sPv}, {QSTR}, 0
s_cselect_b64 s[{sFb}:{sFb + 1}], -1, 0""")

    def init(self):
        a = self.a
        L = II(f"""s_cmp_ge_u32 s2, 256
s_cbranch_scc1 L_end
s_load_dwordx16 s[44:59], s[0:1], 0
s_load_dwordx4 s[60:63], s[0:1], 64
s_load_dwordx4 s[88:91], s[0:1], 80
s_load_dwordx2 s[64:65], s[0:1], 96
v_lshrrev_b32 v1, 6, v0
v_and_b32 v2, 63, v0
v_readfirstlane_b32 s3, v1
s_and_b32 s4, s2, 7
s_lshr_b32 s92, s2, 3
s_lshr_b32 s6, s4, 2
s_and_b32 s4, s4, 3
s_lshl_b32 s4, s4, 2
{'s_and_b32 s93, s92, 3' if a.map else 's_lshr_b32 s93, s92, 3'}
s_add_u32 s4, s4, s93
{'s_lshr_b32 s7, s92, 2' if a.map else 's_and_b32 s7, s92, 7'}
s_lshl_b32 s{sW4}, s3, 12
v_lshrrev_b32 v3, 5, v2
v_and_b32 v4, 31, v2
v_and_b32 v5, 1, v1
v_lshlrev_b32 v5, 3, v5
v_lshl_or_b32 v5, v3, 1, v5
v_xor_b32 v6, v4, v5
v_xor_b32 v7, 4, v6
v_lshl_add_u32 v8, v1, 3, v3
v_lshlrev_b32 v9, 13, v8
v_lshlrev_b32 v12, 2, v3
v_xor_b32 v12, v12, v4
v_xor_b32 v13, 8, v12
v_lshl_add_u32 v{oWq}, v12, 4, v9
v_lshl_add_u32 v{oWq + 1}, v13, 4, v9
s_mul_i32 s{sW8}, s3, 4104
v_add_u32 v{oWq + 1}, {2 * 8192 - 2048}, v{oWq + 1}
v_and_b32 v10, 15, v2
v_lshrrev_b32 v11, 4, v2
v_lshrrev_b32 v19, 2, v2
v_and_b32 v20, 3, v2
v_mul_u32_u24 v12, 48, v1
v_add_u32 v12, v12, v19
v_mul_u32_u24 v12, 896, v12
v_sub_u32 v13, 0, v11
v_xor_b32 v13, v13, v20
v_and_b32 v13, 3, v13
v_lshl_add_u32 v{vX}, v13, 4, v12
v_add_u32 v{vX + 1}, {16 * 896 - 1024}, v{vX}
v_add_u32 v{vX + 2}, {32 * 896 - 2048}, v{vX}
s_waitcnt lgkmcnt(0)
s_cmp_eq_u32 s6, 0
s_cselect_b64 s[{SRD_X}:{SRD_X + 1}], s[44:45], s[54:55]
s_cselect_b64 s[{SRD_K}:{SRD_K + 1}], s[46:47], s[56:57]
s_cselect_b64 s[{SRD_V}:{SRD_V + 1}], s[48:49], s[58:59]
s_cselect_b64 s[{SRD_WQ}:{SRD_WQ + 1}], s[50:51], s[60:61]
s_cselect_b64 s[{SRD_WO}:{SRD_WO + 1}], s[52:53], s[62:63]
s_mul_i32 s94, s7, 172032
s_add_u32 s{SRD_X}, s{SRD_X}, s94
s_addc_u32 s{SRD_X + 1}, s{SRD_X + 1}, 0
s_mov_b32 s{SRD_X + 2}, 172032
s_mov_b32 s{SRD_X + 3}, 0x20000
s_lshl_b32 s94, s4, 9
s_add_u32 s{SRD_WQ}, s{SRD_WQ}, s94
s_addc_u32 s{SRD_WQ + 1}, s{SRD_WQ + 1}, 0
s_mov_b32 s{SRD_WQ + 2}, {447 * 8192 + 512}
s_mov_b32 s{SRD_WQ + 3}, 0x20000""")
        L[2:2] = self.leak("s")
        if a.trace:
            L[2:2] = II("s_mov_b32 s96, 0\nv_mov_b32 v252, 0\nv_mov_b32 v253, 0") + self.trace()
        tcalc = II(f"""s_lshl_b32 s94, s7, 2
s_add_u32 s94, s94, s3
s_lshl_b32 s94, s94, 13
v_lshl_add_u32 v13, v19, 18, s94
v_lshl_add_u32 v13, v20, 7, v13
v_cmp_gt_u32 vcc, {4 * a.tb}, v2
v_mov_b32 v16, 0x40000000
s_and_b32 s94, s4, 3
s_lshl_b32 s94, s94, 2
v_cndmask_b32 v{vTw}, v16, v13, vcc
s_add_u32 s94, s94, s3
s_mul_i32 s94, s94, {12 * 896}
v_mul_u32_u24 v13, 43, v2
v_lshrrev_b32 v13, 9, v13
v_mul_u32_u24 v14, 12, v13
v_sub_u32 v14, v2, v14
v_mul_u32_u24 v14, 896, v14
v_lshl_add_u32 v13, v13, 7, v14
v_cmp_gt_u32 vcc, {6 * a.tb}, v2
v_add_u32 v13, s94, v13
s_nop 0
v_cndmask_b32 v{vTw + 1}, v16, v13, vcc""")
        kv = II(f"""s_lshl_b32 s94, s7, 4
s_add_u32 s94, s94, s4
s_lshl_b32 s95, s94, 19
s_add_u32 s{SRD_K}, s{SRD_K}, s95
s_addc_u32 s{SRD_K + 1}, s{SRD_K + 1}, 0
s_mov_b32 s{SRD_K + 2}, 0x80000
s_mov_b32 s{SRD_K + 3}, 0x20000
s_add_u32 s{SRD_V}, s{SRD_V}, s95
s_addc_u32 s{SRD_V + 1}, s{SRD_V + 1}, 0
s_mov_b32 s{SRD_V + 2}, 0x80000
s_mov_b32 s{SRD_V + 3}, 0x20000
s_mov_b32 s{sK}, 0
s_mov_b32 s{sV}, 0
v_and_b32 v9, 1, v1
v_lshlrev_b32 v9, {a.wb}, v9
v_lshrrev_b32 v12, 1, v1
v_lshl_add_u32 v9, v12, {a.wc}, v9
v_lshl_add_u32 v9, v3, {a.eb}, v9
v_lshl_add_u32 v{oV}, v6, 4, v9
v_lshl_add_u32 v{oV + 1}, v7, 4, v9
v_lshl_or_b32 v12, v1, 2, v3
v_xor_b32 v12, v4, v12
v_xor_b32 v13, 2, v12
v_lshl_add_u32 v{oK}, v12, 4, v9
v_lshl_add_u32 v{oK + 1}, v13, 4, v9
v_add_u32 v{oK + 1}, {(1 << a.xb) - 2048}, v{oK + 1}
v_add_u32 v{oV + 1}, {(1 << a.xb) - 2048}, v{oV + 1}
v_mul_u32_u24 v13, 3072, v1
v_lshl_add_u32 v{oSt}, v2, 4, v13""")
        rest = f"""s_lshl_b32 s95, s6, 3
s_add_u32 s95, s95, s7
s_mul_i32 s93, s95, {GSTR}
s_add_u32 s{SRD_GRP}, s64, s93
s_addc_u32 s{SRD_GRP + 1}, s65, 0
s_mov_b32 s{SRD_GRP + 2}, {GSTR}
s_mov_b32 s{SRD_GRP + 3}, 0x20000
s_mul_i32 s93, s95, {a.flagstride}
s_add_u32 s93, s93, {FLAGOFF}
s_add_u32 s{SRD_FLG}, s64, s93
s_addc_u32 s{SRD_FLG + 1}, s65, 0
s_mov_b32 s{SRD_FLG + 2}, 4096
s_mov_b32 s{SRD_FLG + 3}, 0x20000
s_getreg_b32 s{sXcc}, hwreg(HW_REG_XCC_ID, 0, 4)
s_lshl_b32 s{sMyF}, s4, {a.fsh}
s_lshr_b32 s93, s4, 2
s_lshl_b32 s{sIds}, s93, {a.fsh + 2}
s_add_u32 s{sIds}, s{sIds}, 4
s_mul_i32 s{sSt + 3}, s93, {QSTR}
s_mul_i32 s{sSt}, s93, {4 * QSTR}
s_lshl_b32 s93, s93, 7
s_lshl_b32 s94, s3, 2
s_add_u32 s93, s93, s94
s_add_u32 s93, s93, 2048
s_and_b32 s94, s4, 3
s_lshl_b32 s94, s94, 4
s_add_u32 s{sMyR}, s93, s94
s_xor_b32 s{sPrR}, s{sMyR}, 16
s_xor_b32 s{sPrR + 1}, s{sMyR}, 32
v_mov_b32 v{vL}, 0
v_mov_b32 v21, s{sXcc}
v_lshlrev_b32 v22, 12, v2
v_lshlrev_b32 v23, 12, v0
buffer_store_dword v{vL}, v23, {srd(SRD_FLG)}, s{sMyF} offen sc1
buffer_store_dword v21, v23, {srd(SRD_FLG)}, s{sMyF} offen offset:4 sc1
buffer_store_dword v{vL}, v22, {srd(SRD_FLG)}, s{sMyR} offen sc1
s_add_u32 s{sSt + 3}, s{sSt + 3}, {FBASE}
s_add_u32 s{sSt}, s{sSt}, {RBASE}
s_and_b32 s{sPc}, s4, 3
s_xor_b32 s{sPc + 1}, s{sPc}, 1
s_xor_b32 s{sPc + 2}, s{sPc}, 3
s_xor_b32 s{sPc + 3}, s{sPc}, 2
s_mul_i32 s{sD}, s4, {DSTR}
s_mov_b32 s{sSpin}, 0x40000
s_lshl_b32 s93, s95, 4
s_add_u32 s{SRD_DBG}, s90, s93
s_addc_u32 s{SRD_DBG + 1}, s91, 0
s_mov_b32 s{SRD_DBG + 2}, 4
s_mov_b32 s{SRD_DBG + 3}, 0x20000
s_mul_i32 s93, s7, {192 * 1792}
s_mul_i32 s94, s6, 896
s_add_u32 s93, s93, s94
s_add_u32 s{SRD_OUT}, s88, s93
s_addc_u32 s{SRD_OUT + 1}, s89, 0
s_mov_b32 s{SRD_OUT + 2}, {191 * 1792 + 896}
s_mov_b32 s{SRD_OUT + 3}, 0x20000
s_lshl_b32 s{sGw}, s3, 4
s_add_u32 s{sGw}, s{sGw}, s4
s_lshr_b32 s93, s4, 2
s_sub_u32 s93, s{sGw}, s93
s_cmp_eq_u32 s3, 3
s_cselect_b32 s{sGw}, s93, s{sGw}
s_and_b32 s93, s4, s3
s_add_u32 s94, s7, 60
s_cmp_eq_u32 s93, 3
s_cselect_b32 s{sGw}, s94, s{sGw}
s_sub_u32 s94, s{sGw}, 24
s_mul_i32 s93, s94, 5462
s_lshr_b32 s93, s93, 16
s_mul_i32 s93, s93, 36
s_add_u32 s94, s94, s93
s_add_u32 s93, s{sGw}, 144
s_cmp_lt_u32 s{sGw}, 24
s_cselect_b32 s93, s93, s94
s_cselect_b32 s94, s{sGw}, s94
s_cselect_b32 s95, 0, {FBASE}
s_mov_b32 s{sRq + 1}, {HC}
s_cselect_b32 s{sRq + 1}, {4 * DSTR}, s{sRq + 1}
s_mov_b32 s{sRb + 1}, {QSTR}
s_cselect_b32 s{sRb + 1}, {DSTR}, s{sRb + 1}
s_lshl_b32 s94, s94, 10
s_add_u32 s{sRb}, s94, s95
s_mov_b32 s{sRq}, 0
s_lshl_b32 s{sRq + 2}, s{sRq + 1}, 1
s_add_u32 s{sRq + 3}, s{sRq + 2}, s{sRq + 1}
s_mul_i32 s94, s93, 5462
s_lshr_b32 s94, s94, 16
s_mul_i32 s95, s94, 12
s_sub_u32 s95, s93, s95
s_mul_i32 s95, s95, {16 * 1792}
s_lshl_b32 s94, s94, 6
s_add_u32 s{sOo}, s94, s95
s_mul_i32 s95, s4, 229376
s_add_u32 s{SRD_WO}, s{SRD_WO}, s95
s_addc_u32 s{SRD_WO + 1}, s{SRD_WO + 1}, 0
s_sub_u32 s{SRD_WO}, s{SRD_WO}, 4096
s_subb_u32 s{SRD_WO + 1}, s{SRD_WO + 1}, 0
s_mov_b32 s{SRD_WO + 2}, {229376 + 4096}
s_mov_b32 s{SRD_WO + 3}, 0x20000
s_mov_b32 s{sC}, {f32(1.4426950408889634 / 16)}
v_lshl_add_u32 v13, v1, 6, v19
v_mul_u32_u24 v13, 896, v13
v_and_b32 v14, 1, v11
v_lshlrev_b32 v14, 1, v14
v_xor_b32 v15, v14, v20
v_lshl_add_u32 v13, v15, 4, v13
v_add_u32 v{oWo}, 4096, v13
v_add_u32 v{oWo + 1}, {4096 + 32 * 896 - 2048}, v13
v_lshrrev_b32 v15, 1, v20
v_or_b32 v15, v15, v14
v_lshlrev_b32 v15, 4, v15
v_lshl_add_u32 v15, v19, 6, v15
v_and_b32 v14, 1, v2
v_lshl_add_u32 v255, v14, 3, v15
v_lshrrev_b32 v13, 1, v10
v_and_b32 v14, 1, v10
v_lshl_add_u32 v13, v13, 2, v14
v_lshlrev_b32 v13, 9, v13
v_and_b32 v14, 1, v11
v_xor_b32 v15, v11, v10
v_lshl_add_u32 v13, v15, 4, v13
v_add_u32 v{aK}, {self.slot(F0) * 32768}, v13
v_xor_b32 v{aK + 1}, 64, v{aK}
v_xor_b32 v{aK + 2}, 128, v{aK}
v_xor_b32 v{aK + 3}, 192, v{aK}
v_bfe_u32 v13, v2, 3, 1
v_bfe_u32 v15, v2, 2, 1
v_lshlrev_b32 v16, 3, v11
v_lshl_add_u32 v16, v13, 2, v16
v_add_u32 v16, v16, v15
v_lshlrev_b32 v16, 9, v16
v_lshlrev_b32 v17, 3, v14
v_lshl_or_b32 v17, v13, 2, v17
v_lshl_or_b32 v17, v15, 1, v17
v_bfe_u32 v18, v2, 1, 1
v_or_b32 v17, v17, v18
v_lshl_add_u32 v16, v17, 4, v16
v_and_b32 v18, 1, v2
v_lshl_add_u32 v16, v18, 3, v16
v_add_u32 v{aV}, 0x10000, v16
v_mul_u32_u24 v16, 4104, v11
v_lshl_add_u32 v16, v13, 11, v16
v_lshl_add_u32 v16, v15, 9, v16
v_add_u32 v16, 16320, v16
v_lshl_add_u32 v{aU[0]}, v10, 4, v16
v_xor_b32 v17, 4, v10
v_lshl_add_u32 v{aU[1]}, v17, 4, v16
v_xor_b32 v17, 8, v10
v_lshl_add_u32 v{aU[2]}, v17, 4, v16
v_xor_b32 v17, 12, v10
v_lshl_add_u32 v{aU[3]}, v17, 4, v16
v_lshrrev_b32 v13, 2, v10
v_sub_u32 v13, 0, v13
v_xor_b32 v13, v13, v11
v_and_b32 v13, 3, v13
v_lshlrev_b32 v13, 4, v13
v_lshl_add_u32 v13, v10, 6, v13
v_lshl_add_u32 v{aQ + 4}, v1, 12, v13
v_mov_b32 v{vT}, 1"""
        rest = rest.split("\n")
        code = II(f"""s_getpc_b64 s[94:95]
L_pc:
s_lshl_b32 s93, s92, 2
s_add_u32 s93, s93, s3
s_lshl_b32 s93, s93, 9
v_lshl_add_u32 v13, v20, 7, s93
v_min_u32 v13, L_last-L_page0, v13
v_add_u32 v13, L_page0-L_pc, v13
v_mov_b32 v15, s95
v_add_co_u32 v14, vcc, s94, v13
s_nop 1
v_addc_co_u32 v15, vcc, 0, v15, vcc
global_load_dword v231, v[14:15], off""") if a.ctouch else []
        rest += [f"v_xor_b32 v{aV + i}, {32 * i}, v{aV}" for i in range(1, 8)]
        rest += [f"v_add_u32 v{aQ + 5 + i}, 0x10000, v{aQ + i}" for i in range(10)]
        rest += f"""s_lshl_b32 s93, s7, 2
s_add_u32 s93, s93, s3
s_mul_i32 s93, s93, {56 * 128}
s_add_u32 s{sTo}, s93, 4096
s_lshl_b32 s93, s{sPc}, 2
s_add_u32 s93, s93, s3
s_mul_i32 s93, s93, {72 * 128}
s_add_u32 s{sTo + 1}, s93, s{sSt}
v_min_u32 v215, 55, v2
v_lshlrev_b32 v215, 7, v215
v_min_u32 v{vCp}, {35 * 128}, v215""".split("\n")
        T = self.trace if a.itrace else (lambda: [])
        late = kv + [I(x) for x in rest]
        if a.pre:
            soon = lambda x: x.kind == "valu" or x.mn == "s_getreg_b32"
            k = max(i for i, x in enumerate(L) if x.text == "s_waitcnt lgkmcnt(0)")
            L[k:k] = code + tcalc + [x for x in late if soon(x)]
            code, tcalc, late = [], [], [x for x in late if not soon(x)]
        L += T() + self.tokens(-1, self.qs[0]) + code + tcalc + self.tokens(-1, self.qs[1]) + T() + late + self.tokens(-1, self.qs[2]) + T()
        L += II("s_branch L_page0\n.p2align 12\nL_page0:")
        for x in L:
            self.cnt.see(x)
        return L

    def tokens(self, n, toks):
        L = []
        for t in toks:
            if t == "W":
                L += self.tokens(n, "Q" if self.nw & 1 else "XQ")
            elif t == "X":
                k = self.nx
                assert k + 1 <= max(n, 0) + 4
                L += II(f"s_mov_b32 s{sT2}, {k * 64}\ns_mov_b32 s{sX2}, {k * 64 + 64}")
                for qb in range(3):
                    for m, so in ((k, sT2), (k + 1, sX2)):
                        L += [I(self.fill_halves(m)[0][0]), self.dma(m, vX + qb, SRD_X, so, qb * 1024, self.a.wfl)]
                self.nx += 2
            elif t == "Q":
                assert self.nw <= max(n, 0) + 4
                m0, pre, d = self.fill_halves(self.nw)[1]
                L += [I(m0)] + pre + d
                self.nw += 1
            elif t == "T":
                k0 = self.a.t0 + self.nt * self.a.tb
                L += II(f"""s_mov_b32 s{sT0}, {k0 * 262144}
s_mov_b32 s{sT1}, {k0 // 2 * 128}
buffer_load_dword v231, v{vTw}, {srd(SRD_WQ)}, s{sT0} offen {self.a.tfl}
buffer_load_dword v231, v{vTw + 1}, {srd(SRD_X)}, s{sT1} offen {self.a.tfl}""")
                self.nt += 1
            elif t == "K":
                L += II(f"buffer_load_dword v231, off, {srd(SRD_K)}, s{sK} nt\nbuffer_load_dword v231, off, {srd(SRD_V)}, s{sV} nt")
            elif t == "O":
                L += II(f"buffer_load_dword v214, v215, {srd(SRD_WO)}, s{sTo} offen")
            elif t == "R":
                L += II(f"buffer_load_dword v214, v{vCp}, {srd(SRD_GRP)}, s{sTo + 1} offen\ns_add_u32 s{sTo + 1}, s{sTo + 1}, {36 * 128}")
            elif t == "H":
                L += self.halves(n, self.nh + 1)
        return L

    def qproj(self, tl):
        a = self.a
        n = 0
        for si, size in enumerate(int(c) for c in a.qseg):
            ks_ = list(range(n, n + size))
            frags = [self.ufrag(k, db) for db in range(16) for k in ks_]
            if size > 1:
                for i, f in enumerate(frags):
                    f["key"], f["size"] = i // size, size
            self.qlast = frags[size - 1::size]
            toks = self.qs[3 + si]
            extra = self.tokens(n, toks)
            if 11 in ks_:
                extra += II(f"buffer_atomic_add v{vT}, v{oSt}, {srd(SRD_DBG)}, 0 offen sc1")
            dwin = (0.1 * toks.count("."), 0.92 - 0.1 * toks.count(","))
            seg = self.segment(tl, n, frags, extra=extra, dwin=dwin, upto_fill=ks_[-1])
            for k in ks_[1:]:
                if str(k) in a.hops.split(","):
                    tl.add("hp", Lazy(lambda cnt, k=k: self.hop(k)), seg["p0"] + 48 * (k - n))
            n += size
            if n == NW:
                self.ones = tl.spread("z", II(f"""v_and_b32 v{vOne}, 0xf0, v{oSt}
v_cmp_eq_u32 vcc, 0, v{vOne}
v_mov_b32 v{vOne + 1}, 0x3f803f80
s_nop 0
v_cndmask_b32 v{vOne}, 0, v{vOne + 1}, vcc
v_mov_b32 v{vOne + 1}, v{vOne}
v_mov_b32 v{vOne + 2}, v{vOne}
v_mov_b32 v{vOne + 3}, v{vOne}"""), seg["p0"] + 2, seg["end"], deps=[seg["bar"]])[-1]
                assert self.nx == NW
            if 7 in ks_:
                assert self.X % 2 == 0
                tl.spread("z", [f"v_accvgpr_write_b32 a{i}, 0" for i in range(O(16 - self.X // 2, 0), 192)], seg["p0"], seg["end"] - 9)

    def qconv(self, tl):
        last = {}
        for ks in range(8):
            L = []
            for qb in range(3):
                s, d = QA(2 * ks, qb), QB(ks, qb)
                L += [f"v_mul_f32 v{s + i}, s{sC}, v{s + i}" for i in range(8)]
                L += [f"v_cvt_pk_bf16_f32 v{d + i}, v{s + 2 * i}, v{s + 2 * i + 1}" for i in range(4)]
            f = self.qlast[2 * ks + 1]
            for x in L:
                last[ks] = tl.add("cv", x, f["pos"] + 6, deps=[f["m"][-1]])
        return last

    def first(self, tl):
        fr = [self.kfrag(F0, 0, 0, j, ks, czero=True) for ks in range(8) for j in range(2)]
        fr += [self.kfrag(F0, 1, 1, j, ks) for j in range(2) for ks in range(8)]

        def h0(tl, seg):
            cv = self.qconv(tl)
            for i in range(16):
                fr[i]["needs"] = [[cv[max(i >> 1, 1)]]] * 3
            return []

        def h16(tl, seg):
            m, mx = self.tilemax((0,))
            m += [f"v_add_f32 v{r}, {f32(self.a.tref)}, v{r}" for r in mx]
            m += [f"v_sub_f32 v{vNm + qb * 4 + r}, 0, v{mx[qb]}" for qb in range(3) for r in range(4)]
            nm = tl.spread("sm", m, tl.pos(), tl.pos(), deps=[fr[15]["m"][-1]])[-1]
            tl.spread("sm", [f"v_sub_f32 v{S(0, j, qb) + r}, v{S(0, j, qb) + r}, v{mx[qb]}" for j in range(2) for qb in range(3) for r in range(4)], tl.pos(), tl.pos())
            return [nm]
        seg = self.segment(tl, F0, fr, hooks={0: h0, 16: h16}, upto=self.upto(0), dwin=(0.0, 0.9), notail=True)
        self.put_softmax(tl, seg["p1"])
        return seg

    def final(self, tl):
        a = self.a
        ls = [vL + qb for qb in range(3)]
        lfin = [f"v_mov_b32 v{vL + qb}, v{LA[qb]}" for qb in range(3)] + self.xlane(ls, "v_add_f32") + [f"v_rcp_f32 v{r}, v{r}" for r in ls]

        def h2(tl, seg):
            self.linv = tl.spread("sm", lfin, tl.pos() + 3, tl.pos() + 16, deps=[self.pvf[1]["mm"][-1]])[-1]
            return []
        fix = [Lazy(self.die_check)] + II(f"""s_add_u32 s{sSt}, s{sSt}, s{sPv}
s_add_u32 s{sSt + 1}, s{sSt}, s{sPv}
s_add_u32 s{sSt + 2}, s{sSt + 1}, s{sPv}
v_add_u32 v{aW}, {self.slot(WO0) * 32768}, v255
v_xor_b32 v{aW + 1}, 32, v{aW}""")
        self.seg_pv(tl, 31, False, hooks={2: h2}, extra=self.tail_tokens(FL), first=fix, dwin=self.tail_win(FL))
        pv = self.pvf[1::2]
        st = {}

        def oconv(tl, seg):
            for ks in range(8):
                f = pv[2 * ks + 1]
                for qb in range(3):
                    t = vE + 8 * ((ks * 3 + qb) & 1)
                    L = [f"v_accvgpr_read_b32 v{t + 4 * b + r}, a{O(2 * ks + b, qb) + r}" for b in range(2) for r in range(4)]
                    L += [f"v_cvt_pk_bf16_f32 v{QB(ks, qb) + i}, v{t + 2 * i}, v{t + 2 * i + 1}" for i in range(4)]
                    for x in L:
                        st[ks, qb] = tl.add("cv", x, f["pos"] + 6, deps=[f["m"][-1], self.ladd])
                        st[ks, qb].over = False
            self.cvdone = st[7, 2]

        slots = []
        for nc in range(7):
            order = [(hs, db) for hs in range(2) for db in range(16)]
            if a.gw:
                order = [(hs, 2 * ks + nb) for hs in range(2) for nb in range(2) for ks in range(8)]
            if nc == 0:
                order = [(hs, 2 * ks + nb) for ks in range(8) for hs in range(2) for nb in range(2)]
            frags = [self.wfrag(hs, db, lambda qb, t=2 * nc + hs, db=db: R("v", ACC(t, qb, db & 1), 4),
                                lambda qb, db=db: R("v", QB(db >> 1, qb), 4), czero=(db < 2)) for hs, db in order]
            hooks = {}
            if nc and a.gw:
                for (hs, db), f in zip(order, frags):
                    f["key"], f["size"] = (hs, db & 1), a.gw
            if nc == 0:
                def h0(tl, seg):
                    oconv(tl, seg)
                    for (hs, db), f in zip(order, frags):
                        f["needs"] = [[st[db >> 1, qb]] for qb in range(3)]
                    return []
                hooks = {0: h0}
            slots += [[f for (hs, db), f in zip(order, frags) if hs == h] for h in range(2)]
            pre, also = [], None
            if nc == 0:
                pre = [Lazy(lambda cnt: II(f"s_cmp_lg_u32 s{sFb}, 0\ns_cbranch_scc1 L_far\nL_near:"))] + II(f"v_mov_b32 v{vT}, 1\nv_lshrrev_b32 v{vT + 1}, {12 - a.fsh}, v{vLn}\nv_and_b32 v{vT + 1}, {15 << a.fsh}, v{vT + 1}")
                pre[1].deps = [self.ladd]
            if nc == 1:
                pre = II(f"""v_bfe_u32 v249, v{vLn}, 12, 4
v_lshrrev_b32 v250, 16, v{vLn}
v_mul_lo_u32 v248, s{sRb + 1}, v250
v_lshl_add_u32 v248, v249, 4, v248
v_add_u32 v248, s{sRb}, v248""")
            if nc == a.dflag:
                pre = II(f"buffer_store_dword v{vT}, v{vTd}, {srd(SRD_FLG)}, s{sMyF} offen sc1")
                also = lambda x: x.tag and x.tag[0] == "st" and a.ring[x.tag[1]] == "D"
            seg = self.segment(tl, WO0 + nc, frags, hooks=hooks, upd="W", last=(nc == 6), dwin=self.tail_win(WO0 + nc), first=pre,
                               extra=self.tail_tokens(WO0 + nc), also=also)
            if nc == a.dflag:
                dbar = seg["bar"]
        end = tl.pos()
        P0 = end - 14 * 48

        def either(text, tag=None, fl=""):
            x = I(text + fl, tag=tag)
            x.alt = text + " sc1"
            return x
        ring = [t for t in range(14) if a.ring[t] != "D"]
        eorder = list(range(14))
        if a.ring[0] == "D" and a.ring[1] != "D":
            eorder[:2] = [1, 0]
        rg, pub, ep_last, free, latest, stores = [], {}, {}, P0 + 96 + 3, [0], {}
        for t in eorder:
            step, k = self.role(t)
            add = step is not None and step > 0
            lo = max(P0 + 48 * (t + 1) + 3 - (0 if t < 2 else min(a.half, (a.elen if add else a.elen0) // 2)), free)
            ln = a.elen if add else a.elen0
            loads = []
            if add:
                r = ring.index(t)
                poll = f"buffer_load_dword v{vPoll}, off, {srd(SRD_FLG)}, s{sPrR + (step == 2)} sc1"

                def check(cnt, r=r, poll=poll):
                    self.spin(f"L_rs{r}", poll, vPoll, f"s_cmp_lt_u32 s{sPv}, {r - 2}", f"L_rb{r}")
                    return self.vwait(cnt, lambda x: f"v{vPoll}" in x.wr) + II(f"""v_readfirstlane_b32 s{sPv}, v{vPoll}
s_nop 0
s_cmp_lt_u32 s{sPv}, {r - 2}
s_cbranch_scc1 L_rs{r}
L_rb{r}:""")
                loads = [I(f"buffer_load_dwordx4 {R('v', IN(r, qb), 4)}, v{oSt}, {srd(SRD_GRP)}, s{sLo} offen offset:{qb * 1024} sc1" + " nt" * (step >= a.ntld)) for qb in range(3)]
                dep = [pub[r - 3], ep_last[ring[r - 3]], self.linv, self.cvdone]
                pl, ck = I(poll), Lazy(check)
                if a.one:
                    pl.pre, pl.post = [I("s_mov_b64 exec, 1")], [I("s_mov_b64 exec, -1")]
                pl.after, ck.after = [(pub[r - 3], a.pmin)], [(pl, a.cmin)]
                early = latest[0] = max(pub[r - 3].when + a.pmin, latest[0])
                late = max(early, lo - a.lmin - a.cmin)
                tp = early + (late - early) * (a.pf if r < 11 else a.pfl)
                tc = tp + a.cmin + (late - tp) * a.cf
                latest[0] = tc + 7
                rg += [(tp, pl, [pub[r - 3]])]
                if a.hold and a.ring[t - 2] in "3D":
                    for x in stores[t - 2]:
                        x.deps.append(loads[-1] if a.hold == 2 else pl)
                if a.hold == 3 and a.ring[t - 1] in "3D":
                    for x in stores[t - 1]:
                        x.deps.append(loads[-1])
                rg += [(tc - 4 + i, x, []) for i, x in enumerate(self.col(t, sLo, 192, sSt + step - 1))]
                rg += [(tc, ck, dep)] + [(tc + 1 + 2 * qb, loads[qb], []) for qb in range(3)]
            pre = [I(f"s_add_u32 s{sSt0}, s{sD}, {k * HC}")] if step is None else self.col(t, sSt0, 192, sSt + step)
            tl.spread("st", pre, min(lo, end), min(lo + 4, end))
            L, marks = [], []
            for rng, qb in [(r_, q_) for r_ in (((0, 1), (2, 3)) if a.half else ((0, 1, 2, 3),)) for q_ in range(3)]:
                b = ACC(t, qb, 0)
                k0 = len(L)
                if add:
                    if rng[0] == 0:
                        w = Lazy(lambda cnt, r=IN(r, qb): self.vwait(cnt, lambda x: f"v{r}" in x.wr))
                        w.deps, w.vec_cost = [loads[qb]], 0
                        L.append(w)
                    for i in rng:
                        x, u = IN(r, qb) + i, vU + (i & 1)
                        L += II(f"""v_lshlrev_b32 v{u}, 16, v{x}
v_and_b32 v{x}, 0xffff0000, v{x}
v_fma_f32 v{b + 2 * i}, v{b + 2 * i}, v{vL + qb}, v{u}
v_fma_f32 v{b + 2 * i + 1}, v{b + 2 * i + 1}, v{vL + qb}, v{x}""")
                else:
                    L += [I(f"v_mul_f32 v{b + 2 * i + k_}, v{vL + qb}, v{b + 2 * i + k_}") for i in rng for k_ in range(2)]
                L += [I(f"v_cvt_pk_bf16_f32 v{b + i}, v{b + 2 * i}, v{b + 2 * i + 1}") for i in rng]
                done = slots[t][7] if rng[-1] == 1 and t >= 2 else slots[max(t, 1)][-1]
                for x in L[k0:]:
                    x.deps = list(x.deps) + [done["m"][-1]]
                if rng[-1] == 3:
                    marks.append(L[-1])
            tl.spread("ep", L, lo, lo + ln, deps=[self.linv])
            for x in L:
                if x.target > end:
                    x.target = end + 0.1 + (x.target - end) / 100
            for qb in range(3):
                txt = f"buffer_store_dwordx4 {R('v', ACC(t, qb, 0), 4)}, v{oSt}, {srd(SRD_GRP)}, s{sSt0} offen offset:{qb * 1024}"
                L.append(either(txt, ("st", t), " nt" * (step >= a.ntstep)) if step in (0, 1, 2) else I(txt + " " + a.stfl, tag=("st", t)))
                tl.add("st", L[-1], marks[qb].target + 0.0001, deps=[marks[qb]])
            free = lo + ln
            stores[t] = L[-3:]
            ep_last[t] = marks[-1]
            if step is None and a.dflag < 7:
                dbar.deps.append(L[-1])
            if t + 4 < 14:
                for m in slots[t + 4][0]["m"]:
                    m.needs.append(L[-1])
            if step in (0, 1, 2):
                r = ring.index(t)
                fdel = a.fdel if step else a.fdel0
                when = lo + ln + fdel
                fs = either(f"buffer_store_dword v{vFlag}, v{vLn}, {srd(SRD_FLG)}, s{sMyR} offen")
                if a.one:
                    fs.pre, fs.post = [I("s_mov_b64 exec, 1")], [I("s_mov_b64 exec, -1")]
                fs.when = when
                pub[r] = fs
                w = Lazy(lambda cnt, t=t: self.vwait(cnt, lambda x: x.tag == ("st", t)))
                w.after = [(L[-1], fdel)]
                for x, dep in ((I(f"v_mov_b32 v{vFlag}, {r + 1}"), []), (w, [L[-1]]), (fs, [])):
                    tl.add("fl", x, when - 1, deps=dep)
        rg += [(latest[0] + 1, I(f"buffer_load_dword v{vT + 2}, v{vT + 1}, {srd(SRD_FLG)}, 0 offen sc1"), [dbar])]
        for when, x, dep in sorted(rg, key=lambda y: y[0]):
            tl.add("rg", x, when, deps=dep)

    def reduce(self):
        a = self.a
        RB = lambda q, u: q * 16 + u * 4
        AC = lambda q, d: q * 8 + d * 4
        lds = lambda fl: [I(f"buffer_load_dwordx4 {R('a', RB(q, u), 4)}, v248, {srd(SRD_GRP)}, s{sRq + q} offen offset:{u * 256} {fl}") for q in range(4) for u in range(4)]
        pack = lambda q: [I(f"v_cvt_pk_bf16_f32 v{AC(q, 0) + k}, v{AC(q, 0) + 2 * k}, v{AC(q, 0) + 2 * k + 1}") for k in range(4)]
        mf = lambda q, u, acc, z: I(f"{MF} {R('v', AC(acc, u & 1), 4)}, {R('v', 220 + 4 * (u >> 1), 4)}, {R('a', RB(q, u), 4)}, " + ("0" if z and u < 2 else R("v", AC(acc, u & 1), 4)))

        def selectors():
            Z = II("""v_and_b32 v238, 1, v249
v_lshlrev_b32 v238, 4, v238
v_mov_b32 v239, 0x3f80
v_lshlrev_b32 v238, v238, v239
v_lshrrev_b32 v237, 1, v249""")
            for which in range(2):
                for d in range(4):
                    code = (d & 1) | (which << 1) | ((d >> 1) << 2)
                    Z += II(f"v_cmp_eq_u32 vcc, {code}, v237\nv_cndmask_b32 v{220 + 4 * which + d}, 0, v238, vcc")
            return Z
        publish = lambda n: II(f"""s_waitcnt vmcnt({n})
s_barrier
buffer_store_dword v{vFlag}, v{vTd}, {srd(SRD_FLG)}, s{sMyF} offen sc1""") + self.trace()
        poll = lambda nm, lv, go: II(f"""{nm}:
buffer_load_dword v{vT + 2}, v{vT + 1}, {srd(SRD_FLG)}, 0 offen sc1
s_waitcnt vmcnt(0)
v_cmp_gt_u32 vcc, {lv}, v{vT + 2}
s_nop 1
s_cbranch_vccz {go}
s_sleep {a.fsleep}
s_sub_u32 s{sSpin}, s{sSpin}, 1
s_cbranch_scc0 {nm}
s_endpgm""")
        L = II(f"""v_mov_b32 v{vFlag}, 2
s_cmp_lt_u32 s{sGw}, 24
s_cbranch_scc1 L_direct
v_mul_u32_u24 v231, 1792, v250
v_lshl_add_u32 v231, v249, 4, v231
v_add_u32 v233, s{sOo}, v231
v_mul_u32_u24 v229, 272, v249
v_lshl_add_u32 v229, v250, 4, v229
s_lshl_b32 s92, s{sW4}, 1
v_add_u32 v229, s92, v229
v_mul_u32_u24 v230, 272, v250
v_lshl_add_u32 v230, v249, 4, v230
v_add_u32 v230, s92, v230""") + selectors() + publish(0) + II(f"""s_cmp_ge_u32 s{sGw}, 60
s_cbranch_scc1 L_done""") + poll("L_poll", 2, "L_go") + [I("L_go:")] + (self.trace() if a.gtrace else []) + lds(a.rdfl)
        put = lambda q: pack(q) + [I(f"ds_write_b128 v229, {R('v', AC(q, 0), 4)} offset:{q * 64}")]
        for q in range(4):
            L += [I(f"s_waitcnt vmcnt({12 - 4 * q})")] + [mf(q, u, q, True) for u in range(4)]
            if q:
                L += put(q - 1)
        L += put(3) + [I(f"ds_read_b128 {R('v', 32 + 4 * q, 4)}, v230 offset:{q * 4 * 272}") for q in range(4)]
        for q in range(4):
            L += II(f"s_mov_b32 s92, {q * 4 * 1792}\ns_waitcnt lgkmcnt({3 - q})\nbuffer_store_dwordx4 {R('v', 32 + 4 * q, 4)}, v233, {srd(SRD_OUT)}, s92 offen {a.outfl}")
        L += [I("L_done:")]
        D = II(f"""L_direct:
v_mul_u32_u24 v231, 1792, v249
v_lshl_add_u32 v231, v250, 4, v231""") + selectors() + publish(0) + II(f"""v_cmp_gt_u32 vcc, 1, v{vT + 2}
s_nop 1
s_cbranch_vccnz L_dpoll
L_dgo:""") + (self.trace() if a.gtrace else []) + lds(a.ddfl)
        for q in range(4):
            D += [I(f"s_waitcnt vmcnt({12 - 4 * q})")] + [mf(q, u, 0, q == 0) for u in range(4)]
        D += pack(0) + II(f"buffer_store_dwordx4 v[0:3], v231, {srd(SRD_OUT)}, s{sOo} offen {a.outfl}\ns_branch L_done") + poll("L_dpoll", 1, "L_dgo")
        assert a.dflag < 6
        return L, D + self.ool

    def pack_muls(self, code):
        out, since, i = [], 99, 0
        while i < len(code):
            x = code[i]
            m = re.match(rf"v_mul_f32 v(\d+), s{sC}, ", x.text)
            if m and since >= 5 and int(m.group(1)) % 2 == 0 and code[i + 1].text.startswith(f"v_mul_f32 v{int(m.group(1)) + 1}, s{sC}, ") \
                    and not any(y.kind == "mfma" for y in code[i + 2:i + 5]):
                r = R("v", int(m.group(1)), 2)
                out.append(I(f"v_pk_mul_f32 {r}, {r}, s[{sC - 1}:{sC}] op_sel:[0,1] op_sel_hi:[1,1]"))
                i += 2
                since += 1
                continue
            since = 0 if x.kind == "mfma" else since + x.vec_cost
            out.append(x)
            i += 1
        return out

    def main_kernel(self):
        a = self.a
        pre = self.init()
        tl = Timeline(self.cnt)
        self.qproj(tl)
        self.first(tl)
        seg = self.seg_pv(tl, 1, False)
        u = len(self.sched)
        for v in range(2, u, 2):
            self.seg_qk(tl, v, False)
            seg = self.seg_pv(tl, v + 1, False)
        trips = (30 - u) // 4
        assert u + 4 * trips == 30
        assert self.nh == 2 * u + a.lead, self.nh
        ini = [f"s_mov_b32 s{sCnt}, {trips}"]
        tl.spread("dma", ini, seg["end"] - 6, seg["end"] - 1)
        pre += tl.run(a.look, a.pull, a.bias)
        if a.pk:
            pre = self.pack_muls(pre)
        pre += self.hop("L")
        if a.trace == 2:
            pre += [I("s_waitcnt lgkmcnt(0)")] + self.trace()
        tl = Timeline(self.cnt)
        for v in (u, u + 2):
            self.seg_qk(tl, v, True)
            self.seg_pv(tl, v + 1, True)
        tl.spread("dma", [f"s_sub_u32 s{sCnt}, s{sCnt}, 1", f"s_cmp_lg_u32 s{sCnt}, 0"], tl.pos() - 3, tl.pos() - 1)
        code = [I(".p2align 6"), I("L_loop:")] + tl.run(a.look, a.pull, a.bias) + [I("s_cbranch_scc1 L_loop")]
        loops = [dict(code=code, count=trips, step=4)]
        shift = 4 * (trips - 1)
        self.nh += 2 * shift
        self.cnt.vm = [I(x.text, tag=x.tag and (x.tag[0], x.tag[1] + shift)) for x in self.cnt.vm]
        tl = Timeline(self.cnt)
        self.seg_qk(tl, 30, False)
        self.final(tl)
        post = tl.run(a.look, a.pull, a.bias, vlate=a.vlate) + self.trace()
        post += [I("L_join:")] + self.leak("j")
        red, some = self.reduce()
        post += red
        if a.trace:
            post += self.trace() + [I("s_waitcnt vmcnt(0)")] + self.trace()
            post += II(f"""s_add_u32 s48, s64, 0xc800000
s_addc_u32 s49, s65, 0
s_mov_b32 s50, 0x80000
s_mov_b32 s51, 0x20000
s_lshl_b32 s3, s2, 11
s_lshr_b32 s4, s{sW4}, 3
s_add_u32 s3, s3, s4
s_getreg_b32 s5, hwreg(HW_REG_XCC_ID)
v_writelane_b32 v252, s5, 63
v_lshrrev_b32 v235, 10, v{vLn}
buffer_store_dword v252, v235, s[48:51], s3 offen
buffer_store_dword v253, v235, s[48:51], s3 offen offset:256""")
        if a.leak:
            post += [I("s_waitcnt vmcnt(0)")] + self.leak("e") + II(f"""{"s_mov_b32 s96, 1" if a.leak[0] == "c" else "s_sub_u32 s96, s100, s98"}
s_mul_i32 s96, s96, {a.leak.split(",")[2]}
s_min_u32 s96, s96, 0x100000
s_memrealtime s[98:99]
s_waitcnt lgkmcnt(0)
L_leak:
s_memrealtime s[100:101]
s_waitcnt lgkmcnt(0)
s_sub_u32 s100, s100, s98
s_cmp_lt_u32 s100, s96
s_cbranch_scc1 L_leak""")
        post += [I("L_end:"), I("s_endpgm")]
        blocks = [dict(code=pre)] + loops + [dict(code=post)]
        nn = fix_hazards(blocks)
        verify_waits(blocks)
        body = sum((b["code"] for b in loops), [])
        fix_hazards([dict(code=some)])
        k0 = next(i for i, x in enumerate(post) if x.text == "L_near:")
        k1 = next(i for i, x in enumerate(post) if x.text == "L_join:")
        ren = lambda t: re.sub(r"L_r([sb])(\d+)", r"L_f\1\2", t)
        far = [I("L_far:")] + [I(ren(getattr(x, "alt", x.text))) for x in post[k0 + 1:k1]] + [I("s_branch L_join")]
        k2 = next(i for i, x in enumerate(some) if x.text.startswith("L_rs"))
        far += [I(ren(x.text)) for x in some[k2:]]
        slow = []
        for k, p in enumerate(self.slow_sites):
            slow += [I(f"L_slow{k}:"), I(f"s_call_b64 s[{sRet}:{sRet + 1}], L_rescale{p}"), I(f"s_branch L_back{k}")]
        for p in sorted(set(self.slow_sites)):
            r = self.slow_routine(p)
            fix_hazards([dict(code=r)])
            slow += r
        if a.v:
            print("nops", nn, "trips", trips, "stamps", sum(x.text.startswith("s_memtime") for x in pre + post), "body", stats(body))
            for nm, code in (("pre", pre), ("post", post)):
                segs, cur = [], []
                for x in code:
                    if x.kind == "bar":
                        segs.append(cur)
                        cur = []
                    cur.append(x)
                segs.append(cur)
                print(nm, "est cycles per segment:", [stats(s)[0] for s in segs])
        if a.pad:
            pre += [I("s_branch L_padded")] + [I("s_nop 0")] * (a.pad // 4) + [I("L_padded:")]
        if a.odrop:
            k0 = next(i for i, x in enumerate(post) if x.kind == "bar" and x.tag and x.tag[1] == WO0)
            k1 = next(i for i, x in enumerate(post) if x.text.startswith("L_join"))
            post = post[:k0] + [x for x in post[k0:k1] if not any(x.text.startswith(d) for d in a.odrop.split(","))] + post[k1:]
        if a.ldrop:
            body = [x for x in body if not any(x.text.startswith(d) for d in a.ldrop.split(","))]
        return self.place_pads(pre + body + post + some + [I("L_last:")] + far + slow)


def text(code, drop=()):
    code = [x for x in code if not any(x.text.startswith(d) for d in drop)]
    return "".join(("" if x.kind == "label" else "    ") + x.text.rstrip() + "\n" for x in code)


HEADER = """;
; LDS holds five 32-KB slots filled by LDS-DMA with the bank swizzle on the source addresses.
;   1. Q^T = Wq^T x^T, scaled by log2(e)/16 and rounded to bf16 (stays in VGPRs as B operands).
;   2. Flash attention over pairs of 32-key tiles, a {K, K} slot then a {V, V} slot. The row reference
;      starts as the true max of tile 0 plus 36 and enters QK as the C operand; a pair with a probability of 2
;      or more branches to L_rescale0, which moves it to the true running max. Row sums come from an MFMA.
; Flags live in d_ws, are cleared at entry, and are trusted only after the group's d_debug counter is full.
; L_pad*: first line of each 4-KB code page, visited early with EXEC = 0 to warm the instruction cache.
"""


def build(a):
    g = Gen(a)
    nm = NAME + "_kernel"
    s = "".join(l for l in open(f"cdna_kernels/{NAME}.s.ref") if l.startswith(";   offset") or l.startswith("; Kernarg"))
    s += "; @launch grid=(256,1,1) block=(256,1,1) lds=163840\n"
    s += HEADER
    s += '.amdgcn_target "amdgcn-amd-amdhsa--gfx950"\n.text\n'
    s += f".globl {nm}\n.p2align 12\n.p2align 8\n.type {nm},@function\n{nm}:\n" + text(g.main_kernel(), a.drop.split(",") if a.drop else ())
    s += f""".section .rodata,"a"
.p2align 6
.amdhsa_kernel {nm}
  .amdhsa_next_free_vgpr 512
  .amdhsa_next_free_sgpr 102
  .amdhsa_accum_offset 256
  .amdhsa_group_segment_fixed_size 0
  .amdhsa_kernarg_size 104
  .amdhsa_user_sgpr_count 2
  .amdhsa_user_sgpr_kernarg_segment_ptr 1
  .amdhsa_system_sgpr_workgroup_id_x 1
.end_amdhsa_kernel
"""
    return s


def parser():
    ap = argparse.ArgumentParser()
    ap.add_argument("-o", default="k.s")
    ap.add_argument("-v", action="store_true")
    for k, v in dict(X=4, Y=2, cut=7, look=10, nq=5, tb=4, t0=2, lead=3, wofast=4, wotouch=30,
                     grp=16, ctouch=1, trace=0, itrace=0, i0=2, flagstride=4352, pollsleep=2, hold=3, dip=-1, dipn=14, pre=1, fsh=5, minlead=0, xb=15, jb=10, wb=12, wc=13, eb=9, half=24, one=0, split=1, smlag=4, rlead=16, both=5, gtrace=0, fsleep=2, ntld=4, ntstep=3, early=0, pk=1, kmaj=0, gk=8, gv=2, gf=2, gw=4, krot=1, lastbar=5, pad=0, map=0, sprint=0, slead=3, ltouch=0, dflag=4, elen=47, elen0=28, fdel=16, fdel0=34, lmin=30, forcefb=0, vlate=3, pmin=14, cmin=18).items():
        ap.add_argument("--" + k, type=int, default=v)
    for k, v in dict(tref=36.0, dmaspan=0.95, pull=3.0, bias=0.0, pf=1.0, pfl=0.3, cf=0.0, dmalo=0.14, slo=0.0, vend=0.4, vbeg=0.26, wend=0.3, wbeg=0.16, pair=1.0).items():
        ap.add_argument("--" + k, type=float, default=v)
    for k, v in dict(kvfl="nt", wfl="", stfl="sc1", rdfl="sc1", ddfl="sc1", outfl="nt", drop="", ldrop="", odrop="", prof="", tfl="", leak="", wo29="", hops="3,L", hopn="5,16", ring="DD000111222333", wos="O|...PP|PP,,,RR||PP|P", sched="2,2",
                     qseg="111122222", qs="WW||T||......WW|WWT||XQQQ|XQT,,,,|XQQQ|XQHH|....H").items():
        ap.add_argument("--" + k, default=v)
    return ap


if __name__ == "__main__":
    a = parser().parse_args()
    txt = build(a)
    open(a.o, "w").write(txt)
```

```python
import argparse, re, struct
from asmlib import *

NAME = "concat_heads__mha_block_cached__gqa_block_cached__near_ridge"
f32 = lambda x: hex(struct.unpack("<I", struct.pack("<f", x))[0])

SRD_X, SRD_WQ, SRD_K, SRD_V, SRD_WO = 8, 12, 16, 20, 24
SRD_GRP, SRD_FLG, SRD_DBG, SRD_OUT = 68, 72, 80, 84
sMyR, sPrR, sMyF, sIds, sTo = 28, 60, 30, 31, 44
sPc, sSt, sD, sFb, sLo, sPv, sXcc, sSpin = 52, 56, 63, 76, 78, 79, 97, 67
sW4, sK, sV, sT0, sT1, sCur, sPrev, sDelta, sPos, sNeg, sCnt, sC = 32, 33, 34, 35, 36, 37, 38, 39, 40, 41, 42, 43
sSt0, sT2, sRet, sGw, sX2 = 4, 5, 6, 66, 29
sRq, sRb, sOo, sW8, sJ = 88, 46, 62, 37, 38
aK, aV, oK, oV, oWq, oWo, oSt = 192, 196, 204, 206, 208, 210, 212
vL, vT, aX, vE, vX, vTmp, vNm = 213, 216, 219, 220, 228, 232, 240
FRAG0 = 192
vCp = 254
aW = 194
LA, vOne = (168, 172, 176), 228
aQ = 236
aU = (236, 237, 238, 239)
vTw = 232
MF = "v_mfma_f32_16x16x32_bf16"
srd = lambda s: f"s[{s}:{s + 3}]"
S = lambda p, j, qb: 24 + p * 48 + (j * 3 + qb) * 4
P = lambda p, qb: 120 + p * 12 + qb * 4
O = lambda db, qb: (db * 3 + qb) * 4
QA = lambda db, qb: ((db >> 1) * 3 + qb) * 8 + (db & 1) * 4
QB = lambda ks, qb: 48 * (ks >> 1) + 12 * (ks & 1) + 4 * qb
XB = lambda ks, qb: (ks & 3) * 12 + qb * 4
ACC = lambda t, qb, nb: 24 + 48 * (t & 3) + qb * 8 + nb * 4
IN = lambda r, qb: (220, 232, 196)[r % 3] + 4 * qb
vLn, vTd, vPoll, vFlag, vU = 208, 209, 244, 245, 246
NW, F0, FL, WO0, NEND = 14, 14, 45, 46, 52
HC = 12288
DSTR, QSTR, FBASE, RBASE, GSTR = 7 * 4096, 37 * 4096, 0x70000, 0x110000, 865 * 4096
FLAGOFF = 16 * GSTR


def II(txt):
    return [I(x) for x in txt.strip().split("\n")]


class Gen:
    def __init__(self, a):
        self.a = a
        self.cnt = Counters()
        self.fc = 0
        self.buf_last = {}
        self.tail = []
        self.slow_sites = []
        self.X, self.Y = a.X, a.Y
        self.nh = 0
        self.lastdma = None
        self.sched = [int(x) for x in a.sched.split(",")]
        self.qs = a.qs.split("|")
        assert len(self.qs) == 3 + len(a.qseg)
        self.nw = self.nx = self.nt = 0
        self.ool = []
        self.wdone = set()
        self.nr = self.nhop = self.flip = 0
        self.wos = a.wos.split("|")

    def slot(self, n):
        nq = self.a.nq
        if n >= WO0:
            return (4, 0, 2, 1, 3)[(n - WO0) % 5]
        return 5 - nq + (n - NW) % nq if n < NW else (0, 2, 1, 3)[(n - F0) % 4]

    def ndma(self, n):
        return 7 if n < NW else 8

    def dma(self, n, voff, s, soff, imm, fl):
        fl = (fl + " ") if fl else ""
        return I(f"buffer_load_dwordx4 v{voff}, {srd(s)}, s{soff} offen offset:{imm} {fl}lds", tag=("fill", n))

    def half_kv(self, n, kind):
        s, vo, so = (SRD_K, oK, sK) if kind == "K" else (SRD_V, oV, sV)
        a = self.a
        used = {a.eb, a.xb, a.jb, a.wb, a.wc}
        assert len(used) == 5 and a.xb >= 11 and a.jb >= 10
        inc = min(b for b in range(9, 19) if b not in used)
        hole = sum(1 << b for b in used if b > inc)
        pre = [] if a.jb == 10 else [I(f"s_add_u32 s{sJ}, s{so}, {(1 << a.jb) - 1024}")]
        L = [self.dma(n, vo + x, s, sJ if j and pre else so, x * 2048 + j * 1024, a.kvfl) for j in range(2) for x in range(2)]
        L += [I(f"s_add_u32 s{so}, s{so}, {hex((1 << inc) + hole)}")] + ([I(f"s_andn2_b32 s{so}, s{so}, {hex(hole)}")] if hole else [])
        return pre, L

    def half_w(self, n, s, vo, offs):
        pre = [I(f"s_mov_b32 s{sT0}, {offs[0]}"), I(f"s_mov_b32 s{sT1}, {offs[1]}")]
        return pre, [self.dma(n, vo + x, s, (sT0, sT1)[j], x * 2048 + j * 1024, self.a.wfl) for j in range(2) for x in range(2)]

    def role(self, t):
        c = self.a.ring[t]
        k = self.a.ring[:t].count(c)
        return (None, k) if c == "D" else (int(c), (k + self.a.krot) % 3)

    def col(self, t, dst, scale, base):
        st, k = self.role(t)
        if st is None:
            c = (768 + 64 * k) * scale
            return [I(f"s_mov_b32 s{dst}, {c}" if base is None else f"s_add_u32 s{dst}, s{base}, {c}")]
        L = [I(f"s_mul_i32 s{dst}, s{sPc + st}, {(128 if k else 64) * scale}"), I(f"s_add_u32 s{dst}, s{dst}, {(64 * (k - 1) if k else 512) * scale}")]
        return L + ([] if base is None else [I(f"s_add_u32 s{dst}, s{dst}, s{base}")])

    def wo_items(self, n, count):
        L = []
        for _ in range(count):
            todo = [t for t in range(14) if t not in self.wdone]
            if not todo or WO0 + (todo[0] >> 1) - 4 > n:
                break
            st, k = self.role(todo[0])
            want = (None, k ^ 1) if st is None else (st ^ 1, 0) if k == 0 else (st, 3 - k)
            ts = [todo[0]] + [t for t in todo[1:] if self.role(t) == want and WO0 + (t >> 1) - 4 <= n]
            regs = [(sT0, sT1), (92, 93)]
            for t, r in zip(ts, regs):
                L += self.col(t, r[0], 1, None) + [I(f"s_add_u32 s{r[1]}, s{r[0]}, {16 * 896 - 1024}")]
            for j in range(2):
                for x in range(2):
                    for t, r in zip(ts, regs):
                        m = WO0 + (t >> 1)
                        L += [I(f"s_add_u32 m0, s{sW4}, {self.slot(m) * 32768 + (t & 1) * 16384}"), self.dma(m, oWo + x, SRD_WO, r[j], x * 2048 + j * 1024, self.a.wfl)]
            self.wdone.update(ts)
            if self.a.v:
                print('seg', n - WO0, 'wo', ts)
        return L

    def fill_halves(self, n):
        H = []
        for hs in range(2):
            if n < NW and hs == 0:
                pre = [I(f"s_mov_b32 s{sT2}, {n * 64}")]
                d = [self.dma(n, vX + qb, SRD_X, sT2, qb * 1024, self.a.wfl) for qb in range(3)]
            elif n < NW:
                pre, d = self.half_w(n, SRD_WQ, oWq, [n * 262144 + j * (32768 - 1024) for j in range(2)])
            else:
                pre, d = self.half_kv(n, "KV"[(n - F0) & 1])
            m0 = f"s_add_u32 m0, s{sW4}, {self.slot(n) * 32768 + hs * 16384}"
            if n < NW and hs:
                m0 = f"s_add_u32 m0, s{sW8}, {self.slot(n) * 32768 + 16320}"
            H.append((m0, pre, d))
        return H

    def fill(self, n):
        L = []
        for m0, pre, d in self.fill_halves(n):
            L += [I(m0)] + pre + d
        return L

    def halves(self, n, upto):
        L = []
        while self.nh < min(upto, 64):
            h = self.nh
            m = F0 + (h >> 1)
            prev = m - 4 if m - 4 >= F0 else max(k for k in range(NW) if self.slot(k) == self.slot(m))
            assert prev < n, (n, h)
            m0, pre, d = self.fill_halves(m)[h & 1]
            L += [I(m0)] + pre + d
            self.nh += 1
        return L

    def at(self, n, reg, hs):
        sl = self.slot(n)
        return reg, (sl & 1) * 32768 + hs * 16384

    def kfrag(self, n, hs, p, j, ks, czero=False):
        r, o = self.at(n, aK + (ks & 3), hs)
        rd = [lambda b: f"ds_read_b128 {R('a', b, 4)}, v{r} offset:{o + j * 1024 + (ks >> 2) * 256}"]
        init = None if ks else (lambda qb: "0" if czero else R("v", vNm + qb * 4, 4))
        return dict(rd=rd, dst=lambda qb: R("v", S(p, j, qb), 4), bop=lambda qb: R("v", QB(ks, qb), 4), init=init, key=("k", j), size=self.a.gk)

    def tfrag(self, hs, db, dst, bop, czero=False):
        rd = [lambda b, j=j: f"ds_read_b64_tr_b16 {R('a', b + 2 * j, 2)}, v{aV + (db & 7)} offset:{hs * 16384 + j * 1024 + (db >> 3) * 256}" for j in range(2)]
        return dict(rd=rd, dst=dst, bop=bop, init=(lambda qb: "0") if czero else None, key=bop(0), size=self.a.gv)

    def wfrag(self, hs, db, dst, bop, czero=False):
        f = self.tfrag(hs, db, dst, bop, czero)
        f["rd"] = [lambda b, j=j: f"ds_read_b64_tr_b16 {R('a', b + 2 * j, 2)}, v{aW + (db & 1)} offset:{hs * 16384 + (db >> 1) * 2048 + j * 1024}" for j in range(2)]
        return f

    def ufrag(self, k, db):
        f = self.tfrag(0, db, lambda qb: R("v", QA(db, qb), 4), lambda qb: R("a", XB(k, qb), 4), k == 0)
        r, o = aQ + 5 * (self.slot(k) >> 1), (self.slot(k) & 1) * 32768
        f["rd"] = [lambda b, j=j: f"ds_read_b64_tr_b16 {R('a', b + 2 * j, 2)}, v{r + (db >> 1 & 3)} offset:{o + (db >> 3) * 256 + j * 1024 + (db & 1) * 8}" for j in range(2)]
        if db == 0:
            f["pre"] = [f"ds_read_b128 {R('a', XB(k, qb), 4)}, v{r + 4} offset:{o + qb * 1024}" for qb in range(3)]
        return f

    def vfrag(self, n, hs, p, db):
        f = self.tfrag(hs, db, lambda qb: R("a", O(db, qb), 4), lambda qb: R("v", P(p, qb), 4))
        r, o = self.at(n, aV + (db & 7), hs)
        f["rd"] = [lambda b, j=j: f"ds_read_b64_tr_b16 {R('a', b + 2 * j, 2)}, v{r} offset:{o + j * 1024 + (db >> 3) * 256}" for j in range(2)]
        return f

    def trace(self):
        if not self.a.trace:
            return []
        return II("""s_memrealtime s[98:99]
s_memtime s[100:101]
s_lshl_b64 exec, 1, s96
s_add_u32 s96, s96, 1
s_waitcnt lgkmcnt(0)
v_mov_b32 v252, s98
v_mov_b32 v253, s100
s_mov_b64 exec, -1""")

    def leak(self, mark):
        m = self.a.leak.split(",")
        L = []
        for k in range(2):
            if len(m) == 3 and m[k] == str(mark):
                L += II(f"s_waitcnt lgkmcnt(0)\ns_memrealtime s[{98 + 2 * k}:{99 + 2 * k}]\ns_waitcnt lgkmcnt(0)")
        return L

    def hop(self, n):
        if str(n) not in self.a.hops.split(","):
            return []
        k = self.nhop
        self.nhop += 1
        L = ["s_mov_b64 exec, 0"]
        for w in range(3):
            L += [f"s_cmp_eq_u32 s3, {w}", f"s_cbranch_scc1 L_hop{k}_{w}"]
        return [I(x) for x in L + [f"s_branch L_hop{k}_3", f"L_hopped{k}:", "s_mov_b64 exec, -1"]]

    def place_pads(self, code):
        k0 = next(i for i, x in enumerate(code) if x.text == "L_page0:")
        k1 = next(i for i, x in enumerate(code) if x.text == "L_last:")
        stubs = "".join(f"L_hop{k}_{w}:\n" for k in range(self.nhop) for w in range(4))
        sz = sizes(code, '.amdgcn_target "amdgcn-amd-amdhsa--gfx950"\n.text\n' + stubs)
        at, page, pads, src = 0, 1, [], {}
        i = k0
        while i < k1:
            x = code[i]
            if x.text.startswith("L_hopped"):
                src[int(x.text[8:-1])] = len(pads)
            if x.text.startswith(".p2align"):
                al = 1 << int(x.text.split()[1])
                at = -(-at // al) * al
            if at >= page * 4096:
                good = code[i - 1].kind == "mfma" and not x.scalar
                if good or at + sz[i] > page * 4096 + 48:
                    pads.append(i)
                    at += 4
                    page += 1
            at += sz[i]
            i += 1
        counts = [int(c) for c in self.a.hopn.split(",")]
        label, target, nxt = {}, {}, 0
        for k in range(self.nhop):
            nxt = max(nxt, src[k])
            mine = list(range(nxt, min(nxt + counts[k], len(pads))))
            nxt += len(mine)
            for w in range(4):
                ch = mine[w::4]
                if not ch:
                    label.setdefault(("h", k), []).append(f"L_hop{k}_{w}:")
                    continue
                label.setdefault(ch[0], []).append(f"L_hop{k}_{w}:")
                for p, q in zip(ch, ch[1:] + [None]):
                    target[p] = f"L_pad{q}" if q is not None else f"L_hopped{k}"
        out = []
        for i, x in enumerate(code):
            if x.text.startswith("L_hopped"):
                out += [I(l) for l in label.get(("h", int(x.text[8:-1])), [])]
            if i in pads:
                p = pads.index(i)
                out += [I(l) for l in label.get(p, [])] + [I(f"L_pad{p}:"), I(f"s_cbranch_execz {target[p]}" if p in target else "s_nop 0")]
            out.append(x)
        if self.a.v:
            print("pages", len(pads), "warmed", len(target), "sources", src)
        return out

    def put_group(self, tl, fs, needs=()):
        qs = [2, 1, 0] if self.flip else [0, 1, 2]
        if self.flip and fs[0].get("swap"):
            fs = fs[::-1]
        self.flip ^= 1
        for x in fs:
            x["m"] = []
        for i, q in enumerate(qs):
            init = {x["dst"](q): x["init"](q) for x in fs if x["init"]}
            for x in (fs[::-1] if i & 1 else fs):
                d = x["dst"](q)
                x["pos"] = tl.pos() - 2
                x.setdefault("first", tl.pos())
                x["m"].append(tl.mfma(f"{MF} {d}, {R('a', x['buf'], 4)}, {x['bop'](q)}, {init.pop(d, d)}",
                                      needs=list(x["ri"]) + list(needs) + list(x.get("needs", [[], [], []])[q])))
        for x in fs:
            self.buf_last[x["buf"]] = x["m"][-1]
            if "more" in x:
                x["mm"] = [tl.mfma(m, needs=x["mneeds"]) for m in x["more"]]

    def groups(self, fs, cuts=()):
        out = []
        for i, f in enumerate(fs):
            if out and i not in cuts and f["key"] == out[-1][1][0]["key"] and len(out[-1][1]) < f["size"]:
                out[-1][1].append(f)
            else:
                out.append((i, [f]))
        return out

    def segment(self, tl, n, frags, hooks=None, dyn=False, upd="", last=False, fills=(), upto=0, extra=(), dwin=None, also=None, first=(), upto_fill=None, notail=False, pace=None):
        hooks = hooks or {}
        X, Y = self.X, self.Y
        p0 = tl.pos()
        st = [] if ((dyn and self.a.trace == 2) or (self.a.trace == 3 and n != WO0)
                    or (self.a.trace == 4 and n not in (F0, WO0)) or (self.a.trace == 6 and n < FL - 1) or (self.a.trace == 7 and (n <= F0 or n > FL or n % 2 == 0))
                    or (self.a.trace == 5 and (dyn or n % 2 or n > F0 + 2) and n not in (F0 + 1, FL, WO0))) else self.trace()

        st = st + ([] if dyn else self.leak(n))
        nhi = NEND if n == WO0 + self.a.lastbar else upto_fill or n

        def barrier(cnt):
            if n > WO0 + self.a.lastbar:
                return st and [I("s_waitcnt lgkmcnt(0)")] + st
            v = 4 * (self.a.lead - 2) if dyn else cnt.need(cnt.vm, lambda x: x.tag and (x.tag[0] == "fill" and n <= x.tag[1] <= nhi or (also and also(x))))
            w = "s_waitcnt " + (f"vmcnt({v}) " if v is not None else "") + "lgkmcnt(0)"
            dip = [I(f"s_sleep {self.a.dipn}")] if n == self.a.dip else []
            return self.hop(n) + dip + [I(w), I("s_barrier", tag=("bar", n, self.ndma(n), nhi))] + st
        bar = tl.add("rd", Lazy(barrier), p0, deps=[self.lastdma] if self.lastdma else [])
        tail, self.tail = self.tail, []
        base = p0 + 3 * (len(tail) - X) - (self.a.rlead if notail else 0)
        nf = len(frags)
        for i, f in enumerate(frags):
            f["buf"] = FRAG0 + 4 * (self.fc % 16)
            self.fc += 1
            f["ri"] = [I(x) for x in f.get("pre", [])] + [I(r(f["buf"])) for r in f["rd"]]
        for _, g in self.groups(tail):
            self.put_group(tl, g)
        seg = dict(p0=p0, p1=tl.pos(), bar=bar, tail=tail, end=p0 + 3 * (len(tail) + nf + 2 * sum("more" in f for f in frags) - (0 if last or notail else X)))
        if n >= WO0 + self.a.lastbar or notail:
            Y = 1
        span = 3.0 * (nf - Y) / nf
        for i, f in enumerate(frags):
            for k, r in enumerate(f["ri"]):
                tl.add("rd", r, base + span * (i + k / len(f["ri"])))
        for f in frags:
            if f.get("late"):
                for r in f["ri"][:3]:
                    tl.streams["rd"].remove(r)
                    tl.add("rx", r, seg["p1"], deps=[bar, tail[-1]["m"][-1]])
        nhead = nf if last or notail else nf - X
        for i, g in self.groups(frags, set(hooks) | {nhead}):
            for f in g:
                if self.buf_last.get(f["buf"]) is not None:
                    f["ri"][0].deps.append(self.buf_last[f["buf"]])
            if i < nhead:
                self.put_group(tl, g, hooks[i](tl, seg) if i in hooks else [])
            else:
                self.tail += g
        nxt = 1e9
        for i, f in reversed(list(enumerate(frags))):
            use = f.get("first", seg["end"] + i - nhead)
            for r in reversed(f["ri"]):
                if r.stream == "rd" and self.a.minlead:
                    nxt = r.target = min(r.target, use - self.a.minlead, nxt - 1)
        if not last:
            regs = ([aX] if "X" in upd else []) + ([aK + i for i in range(4)] if "K" in upd else []) + ([aV + i for i in range(8)] if "V" in upd else []) + ([aW, aW + 1] if "W" in upd else []) + (list(aU) if "U" in upd else [])
            dl = (self.slot((upto_fill or n) + 1) - self.slot(n)) * 32768
            ups = [I(f"v_add_u32 v{r}, {hex(dl & 0xffffffff)}, v{r}") for r in regs]
        if first:
            tl.spread("dma", first, p0 + 1, p0 + 1 + 1.5 * len(first), deps=[bar])
            self.lastdma = first[-1]
        fl = []
        for m in fills:
            fl += self.fill(m)
        fl += self.halves(n, upto) + list(extra)
        if fl:
            lo, hi = dwin or (self.a.dmalo, self.a.dmaspan)
            tl.spread("dma", fl, p0 + 1 + (seg["end"] - p0) * lo, p0 + 1 + (seg["end"] - p0) * hi, deps=[bar])
            self.lastdma = fl[-1]
            dm = [x for x in fl if x.kind == "vmem"]
            if pace:
                b, e, z = pace[0] * 96, pace[1] * 96, seg["end"] - p0 - 4
                ps = [b + (e - b) * i / 3 for i in range(4)] + [e + (z - e) * (i + 1) / (len(dm) - 4) for i in range(len(dm) - 4)]
                if self.a.pair and len(dm) == 8:
                    ps = [ps[i + 1] - self.a.pair if i % 2 == 0 else ps[i] for i in range(8)]
                nxt = seg["end"] - 2
                for x in reversed(fl):
                    if x.kind == "vmem":
                        nxt = p0 + ps[dm.index(x)]
                        x.target = nxt
                    else:
                        nxt = x.target = max(p0 + 1, min(nxt, seg["end"] - 2) - 1.5)
        if not last:
            tl.spread("rd", ups, seg["end"] - 3 * Y, seg["end"] - 1)
        return seg

    def softmax(self, blocks=None):
        blocks = blocks or [(p, j, qb) for p in range(2) for j in range(2) for qb in range(3)]
        L, post = [], []
        for bi, (p, j, qb) in enumerate(blocks):
            e = vE + 4 * (bi & 1)
            for r in range(4):
                L.append(I(f"v_exp_f32 v{e + r}, v{S(p, j, qb) + r}"))
                L[-1].blk = None if r else (p, j, qb)
                L += post[:2] if r == 0 else post[2:] if r == 2 else []
            d = P(p, qb) + 2 * j
            post = II(f"v_cvt_pk_bf16_f32 v{d}, v{e}, v{e + 1}\nv_cvt_pk_bf16_f32 v{d + 1}, v{e + 2}, v{e + 3}\n"
                      f"v_or3_b32 v{vT}, v{d}, v{d + 1}, " + (f"v{vT}" if bi else "0"))
        return L + post + II(f"v_and_b32 v{vTmp}, 0x40004000, v{vT}\nv_cmp_ne_u32 vcc, 0, v{vTmp}")

    def put_softmax(self, tl, p0, floor=0):
        done = {}
        for k in range(p0, tl.pos()):
            done[tl.mf[k].wr[0]] = k
        order = sorted(((p, j, qb) for p in range(2) for j in range(2) for qb in range(3)), key=lambda b: done[f"v{S(*b)}"])
        t = floor
        for x in self.softmax(order):
            dep = []
            if getattr(x, "blk", None):
                k = done[f"v{S(*x.blk)}"]
                t, dep = max(t, min(k + 1 + self.a.smlag, tl.pos())), [tl.mf[k]]
            tl.add("sm", x, t, deps=dep)

    def check(self, tl, p, after, target):
        k = len(self.slow_sites)
        self.slow_sites.append(p)
        br = tl.add("sm", Lazy(lambda cnt: [I(f"s_cbranch_vccnz L_slow{k}"), I(f"L_back{k}:")]), target, deps=after)
        return br

    def xlane(self, regs, op):
        L = []
        for sw in ("v_permlane16_swap_b32", "v_permlane32_swap_b32"):
            L += [f"v_mov_b32 v{vTmp + 4 + i}, v{r}" for i, r in enumerate(regs)]
            L += [f"{sw} v{r}, v{vTmp + 4 + i}" for i, r in enumerate(regs)]
            L += [f"{op} v{r}, v{r}, v{vTmp + 4 + i}" for i, r in enumerate(regs)]
        return L

    def tilemax(self, ps):
        L, mx = [], [vTmp + 1 + qb for qb in range(3)]
        for step in range(4 * len(ps)):
            for qb in range(3):
                v = [S(p, j, qb) + r for p in ps for j in range(2) for r in range(4)]
                if step == 0:
                    L.append(f"v_max_f32 v{mx[qb]}, v{v[0]}, v{v[1]}")
                else:
                    L.append(f"v_max3_f32 v{mx[qb]}, v{mx[qb]}, v{v[2 * step]}, v{v[2 * step + 1]}")
        return L + self.xlane(mx, "v_max_f32"), mx

    def slow_routine(self, p):
        L = [f"L_rescale{p}:", "s_nop 15"]
        m, mx = self.tilemax((0, 1))
        L += m
        L += [f"v_add_f32 v{r}, {f32(self.a.tref)}, v{r}" for r in mx]
        L += [f"v_max_f32 v{r}, 0, v{r}" for r in mx]
        for qb in range(3):
            L += [f"v_sub_f32 v{vNm + qb * 4 + r}, v{vNm + qb * 4 + r}, v{mx[qb]}" for r in range(4)]
            for pp in range(2):
                for j in range(2):
                    L += [f"v_sub_f32 v{S(pp, j, qb) + r}, v{S(pp, j, qb) + r}, v{mx[qb]}" for r in range(4)]
        L += [f"v_exp_f32_e64 v{r}, -v{r}" for r in mx]
        L += [f"v_mul_f32 v{LA[qb]}, v{LA[qb]}, v{mx[qb]}" for qb in range(3)]
        for db in range(16):
            for qb in range(3):
                L += [f"v_accvgpr_read_b32 v{vE + r}, a{O(db, qb) + r}" for r in range(4)]
                L += [f"v_mul_f32 v{vE + r}, v{vE + r}, v{mx[qb]}" for r in range(4)]
                L += [f"v_accvgpr_write_b32 a{O(db, qb) + r}, v{vE + r}" for r in range(4)]
        L = [I(x) for x in L] + self.softmax()[:-2]
        return L + [I("s_nop 3"), I(f"s_setpc_b64 s[{sRet}:{sRet + 1}]")]

    def upto(self, u):
        return self.nh + self.sched[u] if u < len(self.sched) else 2 * u + 2 + self.a.lead

    def paced(self, u, b, e):
        return dict(pace=(b, e)) if self.nh <= 2 * u + self.a.lead else dict(dwin=(0.05, 0.9))

    def seg_qk(self, tl, u, dyn):
        a = self.a
        frags = [self.kfrag(F0 + u, p, p, j, ks) for p in range(2) for j in range(2) for ks in range(8)]
        extra = []
        if u == 30:
            extra = [Lazy(self.dbg_check)] + II(f"""buffer_load_dword v218, v214, {srd(SRD_FLG)}, s{sIds} offen sc1""") + self.tail_tokens(F0 + u)
        seg = self.segment(tl, F0 + u, frags, dyn=dyn, upto=self.upto(u), extra=extra, notail=True, **self.paced(u, a.vbeg, a.vend))
        self.put_softmax(tl, seg["p1"])
        return seg

    def seg_pv(self, tl, u, dyn, hooks=None, **kw):
        a = self.a
        fr = [self.vfrag(F0 + u, h, h, db) for db in range(16) for h in range(2)]
        for i, f in enumerate(fr):
            f["key"], f["size"], f["swap"] = i >> 1, a.gf, a.swap and u < 31
            if u == 1 and not i & 1 and i < 32 - self.X:
                f["init"] = lambda qb: "0"
        cut = 0
        if u == 1 and a.split:
            nh = 32 - self.X
            fr = fr[0:nh:2] + fr[1:nh:2] + fr[nh:]
            cut = nh // 2
            for i, f in enumerate(fr[:nh]):
                f["key"], f["size"], f["swap"] = ("s", i // cut), a.gv, False
        fr[cut + 1]["more"] = [f"{MF} {R('v', LA[qb], 4)}, {R('v', vOne, 4)}, {R('v', P(p ^ (qb & 1), qb), 4)}, " + ("0" if u == 1 and p == 0 else R("v", LA[qb], 4))
                               for qb in range(3) for p in range(2)]
        fr[cut + 1]["mneeds"] = [self.ones]

        def hc(tl, seg):
            self.ladd = self.check(tl, 0, [fr[cut - 1]["m"][-1]] if cut else [], tl.pos())
            return [self.ladd]

        def h0(tl, seg):
            sm = tl.streams["sm"]
            if cut:
                k = max(i for i, x in enumerate(sm) if isinstance(x, I) and x.mn.startswith("v_cvt") and P(0, 0) <= int(x.wr[0][1:]) < P(1, 0))
                seg["bar"].deps.append(sm[k - a.both])
                return [fr[self.X + 1]["ri"][-1], sm[k]]
            seg["bar"].deps.append(sm[-a.both])
            return [fr[self.X + 1]["ri"][-1]] + hc(tl, seg)
        if cut:
            hooks = {cut: hc}
        if u == 1:
            kw["extra"] = II(f"""buffer_load_dword v239, off, {srd(SRD_DBG)}, 0 sc1
v_mbcnt_lo_u32_b32 v213, -1, 0
v_mbcnt_hi_u32_b32 v213, -1, v213
v_lshlrev_b32 v{vLn}, 12, v213
v_lshlrev_b32 v{vTd}, 12, v{oSt}
v_and_b32 v214, 3, v213
v_lshlrev_b32 v214, {a.fsh}, v214""")
            kw["first"], kw["extra"] = kw["extra"], []
        if u < 31:
            kw.update(upto=self.upto(u), **self.paced(u, a.wbeg, a.wend))
        self.pvf = fr
        return self.segment(tl, F0 + u, fr, hooks={**(hooks or {}), 0: h0}, dyn=dyn, **kw)

    def tail_win(self, n):
        t = self.wos[n - FL + 1] if n - FL + 1 < len(self.wos) else ""
        return 0.1 * t.count("."), 0.92 - 0.1 * t.count(",")

    def tail_tokens(self, n, toks=None):
        L = []
        if toks is None:
            toks = self.wos[n - FL + 1] if n - FL + 1 < len(self.wos) else ""
        for c in toks:
            if c == "P":
                L += self.wo_items(n, 1)
            elif c == "O":
                L += II(f"buffer_load_dword v{aX}, v215, {srd(SRD_WO)}, s{sTo} offen")
            elif c == "R":
                L += II(f"buffer_load_dword v{192 + self.nr}, v{vCp}, {srd(SRD_GRP)}, s{sTo + 1} offen\ns_add_u32 s{sTo + 1}, s{sTo + 1}, {36 * 128}")
                self.nr += 1
        return L

    def vwait(self, cnt, pred):
        v = cnt.need(cnt.vm, pred)
        return [] if v is None else [I(f"s_waitcnt vmcnt({min(v, 63)})")]

    def spin(self, nm, load, reg, test, back):
        self.ool += II(f"""{nm}:
s_sleep {self.a.pollsleep}
{load}
s_waitcnt vmcnt(0)
v_readfirstlane_b32 s{sPv}, v{reg}
s_nop 1
{test}
s_cbranch_scc0 {back}
s_sub_u32 s{sSpin}, s{sSpin}, 1
s_cbranch_scc0 {nm}
s_endpgm""")

    def dbg_check(self, cnt):
        self.spin("L_dbg", f"buffer_load_dword v239, off, {srd(SRD_DBG)}, 0 sc1", 239, f"s_and_b32 s{sPv}, s{sPv}, 15", "L_dbgok")
        return self.vwait(cnt, lambda x: "v239" in x.wr) + II(f"""v_readfirstlane_b32 s{sPv}, v239
s_nop 1
s_and_b32 s{sPv}, s{sPv}, 15
s_cbranch_scc1 L_dbg
L_dbgok:""")

    def die_check(self, cnt):
        return self.vwait(cnt, lambda x: "v218" in x.wr) + II(f"""v_cmp_ne_u32 s[{sFb}:{sFb + 1}], s{sXcc}, v218
s_nop 1
s_cmp_lg_u64 s[{sFb}:{sFb + 1}], {-1 if self.a.forcefb else 0}
s_cselect_b32 s{sPv}, {QSTR}, 0
s_cselect_b64 s[{sFb}:{sFb + 1}], -1, 0""")

    def init(self):
        a = self.a
        L = II(f"""s_cmp_ge_u32 s2, 256
s_cbranch_scc1 L_end
s_load_dwordx16 s[44:59], s[0:1], 0
s_load_dwordx4 s[60:63], s[0:1], 64
s_load_dwordx4 s[88:91], s[0:1], 80
s_load_dwordx2 s[64:65], s[0:1], 96
v_lshrrev_b32 v1, 6, v0
v_and_b32 v2, 63, v0
v_readfirstlane_b32 s3, v1
s_and_b32 s4, s2, 7
s_lshr_b32 s92, s2, 3
s_lshr_b32 s6, s4, 2
s_and_b32 s4, s4, 3
s_lshl_b32 s4, s4, 2
{'s_and_b32 s93, s92, 3' if a.map else 's_lshr_b32 s93, s92, 3'}
s_add_u32 s4, s4, s93
{'s_lshr_b32 s7, s92, 2' if a.map else 's_and_b32 s7, s92, 7'}
s_lshl_b32 s{sW4}, s3, 12
v_lshrrev_b32 v3, 5, v2
v_and_b32 v4, 31, v2
v_and_b32 v5, 1, v1
v_lshlrev_b32 v5, 3, v5
v_lshl_or_b32 v5, v3, 1, v5
v_xor_b32 v6, v4, v5
v_xor_b32 v7, 4, v6
v_lshl_add_u32 v8, v1, 3, v3
v_lshlrev_b32 v9, 13, v8
v_lshlrev_b32 v12, 2, v3
v_xor_b32 v12, v12, v4
v_xor_b32 v13, 8, v12
v_lshl_add_u32 v{oWq}, v12, 4, v9
v_lshl_add_u32 v{oWq + 1}, v13, 4, v9
s_mul_i32 s{sW8}, s3, 4104
v_add_u32 v{oWq + 1}, {2 * 8192 - 2048}, v{oWq + 1}
v_and_b32 v10, 15, v2
v_lshrrev_b32 v11, 4, v2
v_lshrrev_b32 v19, 2, v2
v_and_b32 v20, 3, v2
v_mul_u32_u24 v12, 48, v1
v_add_u32 v12, v12, v19
v_mul_u32_u24 v12, 896, v12
v_sub_u32 v13, 0, v11
v_xor_b32 v13, v13, v20
v_and_b32 v13, 3, v13
v_lshl_add_u32 v{vX}, v13, 4, v12
v_add_u32 v{vX + 1}, {16 * 896 - 1024}, v{vX}
v_add_u32 v{vX + 2}, {32 * 896 - 2048}, v{vX}
s_waitcnt lgkmcnt(0)
s_cmp_eq_u32 s6, 0
s_cselect_b64 s[{SRD_X}:{SRD_X + 1}], s[44:45], s[54:55]
s_cselect_b64 s[{SRD_K}:{SRD_K + 1}], s[46:47], s[56:57]
s_cselect_b64 s[{SRD_V}:{SRD_V + 1}], s[48:49], s[58:59]
s_cselect_b64 s[{SRD_WQ}:{SRD_WQ + 1}], s[50:51], s[60:61]
s_cselect_b64 s[{SRD_WO}:{SRD_WO + 1}], s[52:53], s[62:63]
s_mul_i32 s94, s7, 172032
s_add_u32 s{SRD_X}, s{SRD_X}, s94
s_addc_u32 s{SRD_X + 1}, s{SRD_X + 1}, 0
s_mov_b32 s{SRD_X + 2}, 172032
s_mov_b32 s{SRD_X + 3}, 0x20000
s_lshl_b32 s94, s4, 9
s_add_u32 s{SRD_WQ}, s{SRD_WQ}, s94
s_addc_u32 s{SRD_WQ + 1}, s{SRD_WQ + 1}, 0
s_mov_b32 s{SRD_WQ + 2}, {447 * 8192 + 512}
s_mov_b32 s{SRD_WQ + 3}, 0x20000""")
        L[2:2] = self.leak("s")
        if a.trace:
            L[2:2] = II("s_mov_b32 s96, 0\nv_mov_b32 v252, 0\nv_mov_b32 v253, 0") + self.trace()
        tcalc = II(f"""s_lshl_b32 s94, s7, 2
s_add_u32 s94, s94, s3
s_lshl_b32 s94, s94, 13
v_lshl_add_u32 v13, v19, 18, s94
v_lshl_add_u32 v13, v20, 7, v13
v_cmp_gt_u32 vcc, {4 * a.tb}, v2
v_mov_b32 v16, 0x40000000
s_and_b32 s94, s4, 3
s_lshl_b32 s94, s94, 2
v_cndmask_b32 v{vTw}, v16, v13, vcc
s_add_u32 s94, s94, s3
s_mul_i32 s94, s94, {12 * 896}
v_mul_u32_u24 v13, 43, v2
v_lshrrev_b32 v13, 9, v13
v_mul_u32_u24 v14, 12, v13
v_sub_u32 v14, v2, v14
v_mul_u32_u24 v14, 896, v14
v_lshl_add_u32 v13, v13, 7, v14
v_cmp_gt_u32 vcc, {6 * a.tb}, v2
v_add_u32 v13, s94, v13
s_nop 0
v_cndmask_b32 v{vTw + 1}, v16, v13, vcc""")
        kv = II(f"""s_lshl_b32 s94, s7, 4
s_add_u32 s94, s94, s4
s_lshl_b32 s95, s94, 19
s_add_u32 s{SRD_K}, s{SRD_K}, s95
s_addc_u32 s{SRD_K + 1}, s{SRD_K + 1}, 0
s_mov_b32 s{SRD_K + 2}, 0x80000
s_mov_b32 s{SRD_K + 3}, 0x20000
s_add_u32 s{SRD_V}, s{SRD_V}, s95
s_addc_u32 s{SRD_V + 1}, s{SRD_V + 1}, 0
s_mov_b32 s{SRD_V + 2}, 0x80000
s_mov_b32 s{SRD_V + 3}, 0x20000
s_mov_b32 s{sK}, 0
s_mov_b32 s{sV}, 0
v_and_b32 v9, 1, v1
v_lshlrev_b32 v9, {a.wb}, v9
v_lshrrev_b32 v12, 1, v1
v_lshl_add_u32 v9, v12, {a.wc}, v9
v_lshl_add_u32 v9, v3, {a.eb}, v9
v_lshl_add_u32 v{oV}, v6, 4, v9
v_lshl_add_u32 v{oV + 1}, v7, 4, v9
v_lshl_or_b32 v12, v1, 2, v3
v_xor_b32 v12, v4, v12
v_xor_b32 v13, 2, v12
v_lshl_add_u32 v{oK}, v12, 4, v9
v_lshl_add_u32 v{oK + 1}, v13, 4, v9
v_add_u32 v{oK + 1}, {(1 << a.xb) - 2048}, v{oK + 1}
v_add_u32 v{oV + 1}, {(1 << a.xb) - 2048}, v{oV + 1}
v_mul_u32_u24 v13, 3072, v1
v_lshl_add_u32 v{oSt}, v2, 4, v13""")
        rest = f"""s_lshl_b32 s95, s6, 3
s_add_u32 s95, s95, s7
s_mul_i32 s93, s95, {GSTR}
s_add_u32 s{SRD_GRP}, s64, s93
s_addc_u32 s{SRD_GRP + 1}, s65, 0
s_mov_b32 s{SRD_GRP + 2}, {GSTR}
s_mov_b32 s{SRD_GRP + 3}, 0x20000
s_mul_i32 s93, s95, {a.flagstride}
s_add_u32 s93, s93, {FLAGOFF}
s_add_u32 s{SRD_FLG}, s64, s93
s_addc_u32 s{SRD_FLG + 1}, s65, 0
s_mov_b32 s{SRD_FLG + 2}, 4096
s_mov_b32 s{SRD_FLG + 3}, 0x20000
s_getreg_b32 s{sXcc}, hwreg(HW_REG_XCC_ID, 0, 4)
s_lshl_b32 s{sMyF}, s4, {a.fsh}
s_lshr_b32 s93, s4, 2
s_lshl_b32 s{sIds}, s93, {a.fsh + 2}
s_add_u32 s{sIds}, s{sIds}, 4
s_mul_i32 s{sSt + 3}, s93, {QSTR}
s_mul_i32 s{sSt}, s93, {4 * QSTR}
s_lshl_b32 s93, s93, 7
s_lshl_b32 s94, s3, 2
s_add_u32 s93, s93, s94
s_add_u32 s93, s93, 2048
s_and_b32 s94, s4, 3
s_lshl_b32 s94, s94, 4
s_add_u32 s{sMyR}, s93, s94
s_xor_b32 s{sPrR}, s{sMyR}, 16
s_xor_b32 s{sPrR + 1}, s{sMyR}, 32
v_mov_b32 v{vL}, 0
v_mov_b32 v21, s{sXcc}
v_lshlrev_b32 v22, 12, v2
v_lshlrev_b32 v23, 12, v0
buffer_store_dword v{vL}, v23, {srd(SRD_FLG)}, s{sMyF} offen sc1
buffer_store_dword v21, v23, {srd(SRD_FLG)}, s{sMyF} offen offset:4 sc1
buffer_store_dword v{vL}, v22, {srd(SRD_FLG)}, s{sMyR} offen sc1
s_add_u32 s{sSt + 3}, s{sSt + 3}, {FBASE}
s_add_u32 s{sSt}, s{sSt}, {RBASE}
s_and_b32 s{sPc}, s4, 3
s_xor_b32 s{sPc + 1}, s{sPc}, 1
s_xor_b32 s{sPc + 2}, s{sPc}, 3
s_xor_b32 s{sPc + 3}, s{sPc}, 2
s_mul_i32 s{sD}, s4, {DSTR}
s_mov_b32 s{sSpin}, 0x40000
s_lshl_b32 s93, s95, 4
s_add_u32 s{SRD_DBG}, s90, s93
s_addc_u32 s{SRD_DBG + 1}, s91, 0
s_mov_b32 s{SRD_DBG + 2}, 4
s_mov_b32 s{SRD_DBG + 3}, 0x20000
s_mul_i32 s93, s7, {192 * 1792}
s_mul_i32 s94, s6, 896
s_add_u32 s93, s93, s94
s_add_u32 s{SRD_OUT}, s88, s93
s_addc_u32 s{SRD_OUT + 1}, s89, 0
s_mov_b32 s{SRD_OUT + 2}, {191 * 1792 + 896}
s_mov_b32 s{SRD_OUT + 3}, 0x20000
s_lshl_b32 s{sGw}, s3, 4
s_add_u32 s{sGw}, s{sGw}, s4
s_lshr_b32 s93, s4, 2
s_sub_u32 s93, s{sGw}, s93
s_cmp_eq_u32 s3, 3
s_cselect_b32 s{sGw}, s93, s{sGw}
s_and_b32 s93, s4, s3
s_add_u32 s94, s7, 60
s_cmp_eq_u32 s93, 3
s_cselect_b32 s{sGw}, s94, s{sGw}
s_sub_u32 s94, s{sGw}, 24
s_mul_i32 s93, s94, 5462
s_lshr_b32 s93, s93, 16
s_mul_i32 s93, s93, 36
s_add_u32 s94, s94, s93
s_add_u32 s93, s{sGw}, 144
s_cmp_lt_u32 s{sGw}, 24
s_cselect_b32 s93, s93, s94
s_cselect_b32 s94, s{sGw}, s94
s_cselect_b32 s95, 0, {FBASE}
s_mov_b32 s{sRq + 1}, {HC}
s_cselect_b32 s{sRq + 1}, {4 * DSTR}, s{sRq + 1}
s_mov_b32 s{sRb + 1}, {QSTR}
s_cselect_b32 s{sRb + 1}, {DSTR}, s{sRb + 1}
s_lshl_b32 s94, s94, 10
s_add_u32 s{sRb}, s94, s95
s_mov_b32 s{sRq}, 0
s_lshl_b32 s{sRq + 2}, s{sRq + 1}, 1
s_add_u32 s{sRq + 3}, s{sRq + 2}, s{sRq + 1}
s_mul_i32 s94, s93, 5462
s_lshr_b32 s94, s94, 16
s_mul_i32 s95, s94, 12
s_sub_u32 s95, s93, s95
s_mul_i32 s95, s95, {16 * 1792}
s_lshl_b32 s94, s94, 6
s_add_u32 s{sOo}, s94, s95
s_mul_i32 s95, s4, 229376
s_add_u32 s{SRD_WO}, s{SRD_WO}, s95
s_addc_u32 s{SRD_WO + 1}, s{SRD_WO + 1}, 0
s_sub_u32 s{SRD_WO}, s{SRD_WO}, 4096
s_subb_u32 s{SRD_WO + 1}, s{SRD_WO + 1}, 0
s_mov_b32 s{SRD_WO + 2}, {229376 + 4096}
s_mov_b32 s{SRD_WO + 3}, 0x20000
s_mov_b32 s{sC}, {f32(1.4426950408889634 / 16)}
v_lshl_add_u32 v13, v1, 6, v19
v_mul_u32_u24 v13, 896, v13
v_and_b32 v14, 1, v11
v_lshlrev_b32 v14, 1, v14
v_xor_b32 v15, v14, v20
v_lshl_add_u32 v13, v15, 4, v13
v_add_u32 v{oWo}, 4096, v13
v_add_u32 v{oWo + 1}, {4096 + 32 * 896 - 2048}, v13
v_lshrrev_b32 v15, 1, v20
v_or_b32 v15, v15, v14
v_lshlrev_b32 v15, 4, v15
v_lshl_add_u32 v15, v19, 6, v15
v_and_b32 v14, 1, v2
v_lshl_add_u32 v255, v14, 3, v15
v_lshrrev_b32 v13, 1, v10
v_and_b32 v14, 1, v10
v_lshl_add_u32 v13, v13, 2, v14
v_lshlrev_b32 v13, 9, v13
v_and_b32 v14, 1, v11
v_xor_b32 v15, v11, v10
v_lshl_add_u32 v13, v15, 4, v13
v_add_u32 v{aK}, {self.slot(F0) * 32768}, v13
v_xor_b32 v{aK + 1}, 64, v{aK}
v_xor_b32 v{aK + 2}, 128, v{aK}
v_xor_b32 v{aK + 3}, 192, v{aK}
v_bfe_u32 v13, v2, 3, 1
v_bfe_u32 v15, v2, 2, 1
v_lshlrev_b32 v16, 3, v11
v_lshl_add_u32 v16, v13, 2, v16
v_add_u32 v16, v16, v15
v_lshlrev_b32 v16, 9, v16
v_lshlrev_b32 v17, 3, v14
v_lshl_or_b32 v17, v13, 2, v17
v_lshl_or_b32 v17, v15, 1, v17
v_bfe_u32 v18, v2, 1, 1
v_or_b32 v17, v17, v18
v_lshl_add_u32 v16, v17, 4, v16
v_and_b32 v18, 1, v2
v_lshl_add_u32 v16, v18, 3, v16
v_add_u32 v{aV}, 0x10000, v16
v_mul_u32_u24 v16, 4104, v11
v_lshl_add_u32 v16, v13, 11, v16
v_lshl_add_u32 v16, v15, 9, v16
v_add_u32 v16, 16320, v16
v_lshl_add_u32 v{aU[0]}, v10, 4, v16
v_xor_b32 v17, 4, v10
v_lshl_add_u32 v{aU[1]}, v17, 4, v16
v_xor_b32 v17, 8, v10
v_lshl_add_u32 v{aU[2]}, v17, 4, v16
v_xor_b32 v17, 12, v10
v_lshl_add_u32 v{aU[3]}, v17, 4, v16
v_lshrrev_b32 v13, 2, v10
v_sub_u32 v13, 0, v13
v_xor_b32 v13, v13, v11
v_and_b32 v13, 3, v13
v_lshlrev_b32 v13, 4, v13
v_lshl_add_u32 v13, v10, 6, v13
v_lshl_add_u32 v{aQ + 4}, v1, 12, v13
v_mov_b32 v{vT}, 1"""
        rest = rest.split("\n")
        code = II(f"""s_getpc_b64 s[94:95]
L_pc:
s_lshl_b32 s93, s92, 2
s_add_u32 s93, s93, s3
s_lshl_b32 s93, s93, 9
v_lshl_add_u32 v13, v20, 7, s93
v_min_u32 v13, L_last-L_page0, v13
v_add_u32 v13, L_page0-L_pc, v13
v_mov_b32 v15, s95
v_add_co_u32 v14, vcc, s94, v13
s_nop 1
v_addc_co_u32 v15, vcc, 0, v15, vcc
global_load_dword v231, v[14:15], off""") if a.ctouch else []
        rest += [f"v_xor_b32 v{aV + i}, {32 * i}, v{aV}" for i in range(1, 8)]
        rest += [f"v_add_u32 v{aQ + 5 + i}, 0x10000, v{aQ + i}" for i in range(10)]
        rest += f"""s_lshl_b32 s93, s7, 2
s_add_u32 s93, s93, s3
s_mul_i32 s93, s93, {56 * 128}
s_add_u32 s{sTo}, s93, 4096
s_lshl_b32 s93, s{sPc}, 2
s_add_u32 s93, s93, s3
s_mul_i32 s93, s93, {72 * 128}
s_add_u32 s{sTo + 1}, s93, s{sSt}
v_min_u32 v215, 55, v2
v_lshlrev_b32 v215, 7, v215
v_min_u32 v{vCp}, {35 * 128}, v215""".split("\n")
        T = self.trace if a.itrace else (lambda: [])
        late = kv + [I(x) for x in rest]
        if a.pre:
            soon = lambda x: x.kind == "valu" or x.mn == "s_getreg_b32"
            k = max(i for i, x in enumerate(L) if x.text == "s_waitcnt lgkmcnt(0)")
            L[k:k] = code + tcalc + [x for x in late if soon(x)]
            code, tcalc, late = [], [], [x for x in late if not soon(x)]
        L += T() + self.tokens(-1, self.qs[0]) + code + tcalc + self.tokens(-1, self.qs[1]) + T() + late + self.tokens(-1, self.qs[2]) + T()
        L += II("s_branch L_page0\n.p2align 12\nL_page0:")
        for x in L:
            self.cnt.see(x)
        return L

    def tokens(self, n, toks):
        L = []
        for t in toks:
            if t == "W":
                L += self.tokens(n, "Q" if self.nw & 1 else "XQ")
            elif t == "X":
                k = self.nx
                assert k + 1 <= max(n, 0) + 4
                L += II(f"s_mov_b32 s{sT2}, {k * 64}\ns_mov_b32 s{sX2}, {k * 64 + 64}")
                for qb in range(3):
                    for m, so in ((k, sT2), (k + 1, sX2)):
                        L += [I(self.fill_halves(m)[0][0]), self.dma(m, vX + qb, SRD_X, so, qb * 1024, self.a.wfl)]
                self.nx += 2
            elif t == "Q":
                assert self.nw <= max(n, 0) + 4
                m0, pre, d = self.fill_halves(self.nw)[1]
                L += [I(m0)] + pre + d
                self.nw += 1
            elif t == "T":
                k0 = self.a.t0 + self.nt * self.a.tb
                L += II(f"""s_mov_b32 s{sT0}, {k0 * 262144}
s_mov_b32 s{sT1}, {k0 // 2 * 128}
buffer_load_dword v231, v{vTw}, {srd(SRD_WQ)}, s{sT0} offen {self.a.tfl}
buffer_load_dword v231, v{vTw + 1}, {srd(SRD_X)}, s{sT1} offen {self.a.tfl}""")
                self.nt += 1
            elif t == "K":
                L += II(f"buffer_load_dword v231, off, {srd(SRD_K)}, s{sK} nt\nbuffer_load_dword v231, off, {srd(SRD_V)}, s{sV} nt")
            elif t == "O":
                L += II(f"buffer_load_dword v214, v215, {srd(SRD_WO)}, s{sTo} offen")
            elif t == "R":
                L += II(f"buffer_load_dword v214, v{vCp}, {srd(SRD_GRP)}, s{sTo + 1} offen\ns_add_u32 s{sTo + 1}, s{sTo + 1}, {36 * 128}")
            elif t == "H":
                L += self.halves(n, self.nh + 1)
        return L

    def qproj(self, tl):
        a = self.a
        n = 0
        for si, size in enumerate(int(c) for c in a.qseg):
            ks_ = list(range(n, n + size))
            frags = [self.ufrag(k, db) for db in range(16) for k in ks_]
            if size > 1:
                for i, f in enumerate(frags):
                    f["key"], f["size"], f["swap"] = i // size, size, a.swap and n + size < NW
            self.qlast = frags[size - 1::size]
            toks = self.qs[3 + si]
            extra = self.tokens(n, toks)
            if 11 in ks_:
                extra += II(f"buffer_atomic_add v{vT}, v{oSt}, {srd(SRD_DBG)}, 0 offen sc1")
            dwin = (0.1 * toks.count("."), 0.92 - 0.1 * toks.count(","))
            seg = self.segment(tl, n, frags, extra=extra, dwin=dwin, upto_fill=ks_[-1])
            for k in ks_[1:]:
                if str(k) in a.hops.split(","):
                    tl.add("hp", Lazy(lambda cnt, k=k: self.hop(k)), seg["p0"] + 48 * (k - n))
            n += size
            if n == NW:
                self.ones = tl.spread("z", II(f"""v_and_b32 v{vOne}, 0xf0, v{oSt}
v_cmp_eq_u32 vcc, 0, v{vOne}
v_mov_b32 v{vOne + 1}, 0x3f803f80
s_nop 0
v_cndmask_b32 v{vOne}, 0, v{vOne + 1}, vcc
v_mov_b32 v{vOne + 1}, v{vOne}
v_mov_b32 v{vOne + 2}, v{vOne}
v_mov_b32 v{vOne + 3}, v{vOne}"""), seg["p0"] + 2, seg["end"], deps=[seg["bar"]])[-1]
                assert self.nx == NW
            if 7 in ks_:
                assert self.X % 2 == 0
                tl.spread("z", [f"v_accvgpr_write_b32 a{i}, 0" for i in range(O(16 - self.X // 2, 0), 192)], seg["p0"], seg["end"] - 9)

    def qconv(self, tl):
        last = {}
        for ks in range(8):
            L = []
            for qb in range(3):
                s, d = QA(2 * ks, qb), QB(ks, qb)
                L += [f"v_mul_f32 v{s + i}, s{sC}, v{s + i}" for i in range(8)]
                L += [f"v_cvt_pk_bf16_f32 v{d + i}, v{s + 2 * i}, v{s + 2 * i + 1}" for i in range(4)]
            f = self.qlast[2 * ks + 1]
            for x in L:
                last[ks] = tl.add("cv", x, f["pos"] + 6, deps=[f["m"][-1]])
        return last

    def first(self, tl):
        fr = [self.kfrag(F0, 0, 0, j, ks, czero=True) for ks in range(8) for j in range(2)]
        fr += [self.kfrag(F0, 1, 1, j, ks) for j in range(2) for ks in range(8)]

        def h0(tl, seg):
            cv = self.qconv(tl)
            for i in range(16):
                fr[i]["needs"] = [[cv[max(i >> 1, 1)]]] * 3
            return []

        def h16(tl, seg):
            m, mx = self.tilemax((0,))
            m += [f"v_add_f32 v{r}, {f32(self.a.tref)}, v{r}" for r in mx]
            m += [f"v_sub_f32 v{vNm + qb * 4 + r}, 0, v{mx[qb]}" for qb in range(3) for r in range(4)]
            nm = tl.spread("sm", m, tl.pos(), tl.pos(), deps=[fr[15]["m"][-1]])[-1]
            tl.spread("sm", [f"v_sub_f32 v{S(0, j, qb) + r}, v{S(0, j, qb) + r}, v{mx[qb]}" for j in range(2) for qb in range(3) for r in range(4)], tl.pos(), tl.pos())
            return [nm]
        seg = self.segment(tl, F0, fr, hooks={0: h0, 16: h16}, upto=self.upto(0), dwin=(0.0, 0.9), notail=True)
        self.put_softmax(tl, seg["p1"])
        return seg

    def final(self, tl):
        a = self.a
        ls = [vL + qb for qb in range(3)]
        lfin = [f"v_mov_b32 v{vL + qb}, v{LA[qb]}" for qb in range(3)] + self.xlane(ls, "v_add_f32") + [f"v_rcp_f32 v{r}, v{r}" for r in ls]

        def h2(tl, seg):
            self.linv = tl.spread("sm", lfin, tl.pos() + 3, tl.pos() + 16, deps=[self.pvf[1]["mm"][-1]])[-1]
            return []
        fix = [Lazy(self.die_check)] + II(f"""s_add_u32 s{sSt}, s{sSt}, s{sPv}
s_add_u32 s{sSt + 1}, s{sSt}, s{sPv}
s_add_u32 s{sSt + 2}, s{sSt + 1}, s{sPv}
v_add_u32 v{aW}, {self.slot(WO0) * 32768}, v255
v_xor_b32 v{aW + 1}, 32, v{aW}""")
        self.seg_pv(tl, 31, False, hooks={2: h2}, extra=self.tail_tokens(FL), first=fix, dwin=self.tail_win(FL))
        pv = self.pvf[1::2]
        st = {}

        def oconv(tl, seg):
            for ks in range(8):
                f = pv[2 * ks + 1]
                for qb in range(3):
                    t = vE + 8 * ((ks * 3 + qb) & 1)
                    L = [f"v_accvgpr_read_b32 v{t + 4 * b + r}, a{O(2 * ks + b, qb) + r}" for b in range(2) for r in range(4)]
                    L += [f"v_cvt_pk_bf16_f32 v{QB(ks, qb) + i}, v{t + 2 * i}, v{t + 2 * i + 1}" for i in range(4)]
                    for x in L:
                        st[ks, qb] = tl.add("cv", x, f["pos"] + 6, deps=[f["m"][-1], self.ladd])
                        st[ks, qb].over = False
            self.cvdone = st[7, 2]

        slots = []
        for nc in range(7):
            order = [(hs, db) for hs in range(2) for db in range(16)]
            if a.gw:
                order = [(hs, 2 * ks + nb) for hs in range(2) for nb in range(2) for ks in range(8)]
            if nc == 0:
                order = [(hs, 2 * ks + nb) for ks in range(8) for hs in range(2) for nb in range(2)]
            frags = [self.wfrag(hs, db, lambda qb, t=2 * nc + hs, db=db: R("v", ACC(t, qb, db & 1), 4),
                                lambda qb, db=db: R("v", QB(db >> 1, qb), 4), czero=(db < 2)) for hs, db in order]
            hooks = {}
            if nc and a.gw:
                for (hs, db), f in zip(order, frags):
                    f["key"], f["size"] = (hs, db & 1), a.gw
            if nc == 0:
                def h0(tl, seg):
                    oconv(tl, seg)
                    for (hs, db), f in zip(order, frags):
                        f["needs"] = [[st[db >> 1, qb]] for qb in range(3)]
                    return []
                hooks = {0: h0}
            slots += [[f for (hs, db), f in zip(order, frags) if hs == h] for h in range(2)]
            pre, also = [], None
            if nc == 0:
                pre = [Lazy(lambda cnt: II(f"s_cmp_lg_u32 s{sFb}, 0\ns_cbranch_scc1 L_far\nL_near:"))] + II(f"v_mov_b32 v{vT}, 1\nv_lshrrev_b32 v{vT + 1}, {12 - a.fsh}, v{vLn}\nv_and_b32 v{vT + 1}, {15 << a.fsh}, v{vT + 1}")
                pre[1].deps = [self.ladd]
            if nc == 1:
                pre = II(f"""v_bfe_u32 v249, v{vLn}, 12, 4
v_lshrrev_b32 v250, 16, v{vLn}
v_mul_lo_u32 v248, s{sRb + 1}, v250
v_lshl_add_u32 v248, v249, 4, v248
v_add_u32 v248, s{sRb}, v248""")
            if nc == a.dflag:
                pre = II(f"buffer_store_dword v{vT}, v{vTd}, {srd(SRD_FLG)}, s{sMyF} offen sc1")
                also = lambda x: x.tag and x.tag[0] == "st" and a.ring[x.tag[1]] == "D"
            seg = self.segment(tl, WO0 + nc, frags, hooks=hooks, upd="W", last=(nc == 6), dwin=self.tail_win(WO0 + nc), first=pre,
                               extra=self.tail_tokens(WO0 + nc), also=also)
            if nc == a.dflag:
                dbar = seg["bar"]
        end = tl.pos()
        P0 = end - 14 * 48

        def either(text, tag=None, fl=""):
            x = I(text + fl, tag=tag)
            x.alt = text + " sc1"
            return x
        ring = [t for t in range(14) if a.ring[t] != "D"]
        eorder = list(range(14))
        if a.ring[0] == "D" and a.ring[1] != "D":
            eorder[:2] = [1, 0]
        rg, pub, ep_last, free, latest, stores = [], {}, {}, P0 + 96 + 3, [0], {}
        for t in eorder:
            step, k = self.role(t)
            add = step is not None and step > 0
            lo = max(P0 + 48 * (t + 1) + 3 - (0 if t < 2 else min(a.half, (a.elen if add else a.elen0) // 2)), free)
            ln = a.elen if add else a.elen0
            loads = []
            if add:
                r = ring.index(t)
                poll = f"buffer_load_dword v{vPoll}, off, {srd(SRD_FLG)}, s{sPrR + (step == 2)} sc1"

                def check(cnt, r=r, poll=poll):
                    self.spin(f"L_rs{r}", poll, vPoll, f"s_cmp_lt_u32 s{sPv}, {r - 2}", f"L_rb{r}")
                    return self.vwait(cnt, lambda x: f"v{vPoll}" in x.wr) + II(f"""v_readfirstlane_b32 s{sPv}, v{vPoll}
s_nop 0
s_cmp_lt_u32 s{sPv}, {r - 2}
s_cbranch_scc1 L_rs{r}
L_rb{r}:""")
                loads = [I(f"buffer_load_dwordx4 {R('v', IN(r, qb), 4)}, v{oSt}, {srd(SRD_GRP)}, s{sLo} offen offset:{qb * 1024} sc1" + " nt" * (step >= a.ntld)) for qb in range(3)]
                dep = [pub[r - 3], ep_last[ring[r - 3]], self.linv, self.cvdone]
                pl, ck = I(poll), Lazy(check)
                if a.one:
                    pl.pre, pl.post = [I("s_mov_b64 exec, 1")], [I("s_mov_b64 exec, -1")]
                pl.after, ck.after = [(pub[r - 3], a.pmin)], [(pl, a.cmin)]
                early = latest[0] = max(pub[r - 3].when + a.pmin, latest[0])
                late = max(early, lo - a.lmin - a.cmin)
                tp = early + (late - early) * (a.pf if r < 11 else a.pfl)
                tc = tp + a.cmin + (late - tp) * a.cf
                latest[0] = tc + 7
                rg += [(tp, pl, [pub[r - 3]])]
                if a.hold and a.ring[t - 2] in "3D":
                    for x in stores[t - 2]:
                        x.deps.append(loads[-1] if a.hold == 2 else pl)
                if a.hold == 3 and a.ring[t - 1] in "3D":
                    for x in stores[t - 1]:
                        x.deps.append(loads[-1])
                rg += [(tc - 4 + i, x, []) for i, x in enumerate(self.col(t, sLo, 192, sSt + step - 1))]
                rg += [(tc, ck, dep)] + [(tc + 1 + 2 * qb, loads[qb], []) for qb in range(3)]
            pre = [I(f"s_add_u32 s{sSt0}, s{sD}, {k * HC}")] if step is None else self.col(t, sSt0, 192, sSt + step)
            tl.spread("st", pre, min(lo, end), min(lo + 4, end))
            L, marks = [], []
            for rng, qb in [(r_, q_) for r_ in (((0, 1), (2, 3)) if a.half else ((0, 1, 2, 3),)) for q_ in range(3)]:
                b = ACC(t, qb, 0)
                k0 = len(L)
                if add:
                    if rng[0] == 0:
                        w = Lazy(lambda cnt, r=IN(r, qb): self.vwait(cnt, lambda x: f"v{r}" in x.wr))
                        w.deps, w.vec_cost = [loads[qb]], 0
                        L.append(w)
                    for i in rng:
                        x, u = IN(r, qb) + i, vU + (i & 1)
                        L += II(f"""v_lshlrev_b32 v{u}, 16, v{x}
v_and_b32 v{x}, 0xffff0000, v{x}
v_fma_f32 v{b + 2 * i}, v{b + 2 * i}, v{vL + qb}, v{u}
v_fma_f32 v{b + 2 * i + 1}, v{b + 2 * i + 1}, v{vL + qb}, v{x}""")
                else:
                    L += [I(f"v_mul_f32 v{b + 2 * i + k_}, v{vL + qb}, v{b + 2 * i + k_}") for i in rng for k_ in range(2)]
                L += [I(f"v_cvt_pk_bf16_f32 v{b + i}, v{b + 2 * i}, v{b + 2 * i + 1}") for i in rng]
                done = slots[t][7] if rng[-1] == 1 and t >= 2 else slots[max(t, 1)][-1]
                for x in L[k0:]:
                    x.deps = list(x.deps) + [done["m"][-1]]
                if rng[-1] == 3:
                    marks.append(L[-1])
            tl.spread("ep", L, lo, lo + ln, deps=[self.linv])
            for x in L:
                if x.target > end:
                    x.target = end + 0.1 + (x.target - end) / 100
            for qb in range(3):
                txt = f"buffer_store_dwordx4 {R('v', ACC(t, qb, 0), 4)}, v{oSt}, {srd(SRD_GRP)}, s{sSt0} offen offset:{qb * 1024}"
                L.append(either(txt, ("st", t), " nt" * (step >= a.ntstep)) if step in (0, 1, 2) else I(txt + " " + a.stfl, tag=("st", t)))
                tl.add("st", L[-1], marks[qb].target + 0.0001, deps=[marks[qb]])
            free = lo + ln
            stores[t] = L[-3:]
            ep_last[t] = marks[-1]
            if step is None and a.dflag < 7:
                dbar.deps.append(L[-1])
            if t + 4 < 14:
                for m in slots[t + 4][0]["m"]:
                    m.needs.append(L[-1])
            if step in (0, 1, 2):
                r = ring.index(t)
                fdel = a.fdel if step else a.fdel0
                when = lo + ln + fdel
                fs = either(f"buffer_store_dword v{vFlag}, v{vLn}, {srd(SRD_FLG)}, s{sMyR} offen")
                if a.one:
                    fs.pre, fs.post = [I("s_mov_b64 exec, 1")], [I("s_mov_b64 exec, -1")]
                fs.when = when
                pub[r] = fs
                w = Lazy(lambda cnt, t=t: self.vwait(cnt, lambda x: x.tag == ("st", t)))
                w.after = [(L[-1], fdel)]
                for x, dep in ((I(f"v_mov_b32 v{vFlag}, {r + 1}"), []), (w, [L[-1]]), (fs, [])):
                    tl.add("fl", x, when - 1, deps=dep)
        rg += [(latest[0] + 1, I(f"buffer_load_dword v{vT + 2}, v{vT + 1}, {srd(SRD_FLG)}, 0 offen sc1"), [dbar])]
        for when, x, dep in sorted(rg, key=lambda y: y[0]):
            tl.add("rg", x, when, deps=dep)

    def reduce(self):
        a = self.a
        RB = lambda q, u: q * 16 + u * 4
        AC = lambda q, d: q * 8 + d * 4
        lds = lambda fl: [I(f"buffer_load_dwordx4 {R('a', RB(q, u), 4)}, v248, {srd(SRD_GRP)}, s{sRq + q} offen offset:{u * 256} {fl}") for q in range(4) for u in range(4)]
        pack = lambda q: [I(f"v_cvt_pk_bf16_f32 v{AC(q, 0) + k}, v{AC(q, 0) + 2 * k}, v{AC(q, 0) + 2 * k + 1}") for k in range(4)]
        mf = lambda q, u, acc, z: I(f"{MF} {R('v', AC(acc, u & 1), 4)}, {R('v', 220 + 4 * (u >> 1), 4)}, {R('a', RB(q, u), 4)}, " + ("0" if z and u < 2 else R("v", AC(acc, u & 1), 4)))

        def selectors():
            Z = II("""v_and_b32 v238, 1, v249
v_lshlrev_b32 v238, 4, v238
v_mov_b32 v239, 0x3f80
v_lshlrev_b32 v238, v238, v239
v_lshrrev_b32 v237, 1, v249""")
            for which in range(2):
                for d in range(4):
                    code = (d & 1) | (which << 1) | ((d >> 1) << 2)
                    Z += II(f"v_cmp_eq_u32 vcc, {code}, v237\nv_cndmask_b32 v{220 + 4 * which + d}, 0, v238, vcc")
            return Z
        publish = lambda n: II(f"""s_waitcnt vmcnt({n})
s_barrier
buffer_store_dword v{vFlag}, v{vTd}, {srd(SRD_FLG)}, s{sMyF} offen sc1""") + self.trace()
        poll = lambda nm, lv, go: II(f"""{nm}:
buffer_load_dword v{vT + 2}, v{vT + 1}, {srd(SRD_FLG)}, 0 offen sc1
s_waitcnt vmcnt(0)
v_cmp_gt_u32 vcc, {lv}, v{vT + 2}
s_nop 1
s_cbranch_vccz {go}
s_sleep {a.fsleep}
s_sub_u32 s{sSpin}, s{sSpin}, 1
s_cbranch_scc0 {nm}
s_endpgm""")
        L = II(f"""v_mov_b32 v{vFlag}, 2
s_cmp_lt_u32 s{sGw}, 24
s_cbranch_scc1 L_direct
v_mul_u32_u24 v231, 1792, v250
v_lshl_add_u32 v231, v249, 4, v231
v_add_u32 v233, s{sOo}, v231
v_mul_u32_u24 v229, 272, v249
v_lshl_add_u32 v229, v250, 4, v229
s_lshl_b32 s92, s{sW4}, 1
v_add_u32 v229, s92, v229
v_mul_u32_u24 v230, 272, v250
v_lshl_add_u32 v230, v249, 4, v230
v_add_u32 v230, s92, v230""") + selectors() + publish(0) + II(f"""s_cmp_ge_u32 s{sGw}, 60
s_cbranch_scc1 L_done""") + poll("L_poll", 2, "L_go") + [I("L_go:")] + (self.trace() if a.gtrace else []) + lds(a.rdfl)
        put = lambda q: pack(q) + [I(f"ds_write_b128 v229, {R('v', AC(q, 0), 4)} offset:{q * 64}")]
        for q in range(4):
            L += [I(f"s_waitcnt vmcnt({12 - 4 * q})")] + [mf(q, u, q, True) for u in range(4)]
            if q:
                L += put(q - 1)
        L += put(3) + [I(f"ds_read_b128 {R('v', 32 + 4 * q, 4)}, v230 offset:{q * 4 * 272}") for q in range(4)]
        for q in range(4):
            L += II(f"s_mov_b32 s92, {q * 4 * 1792}\ns_waitcnt lgkmcnt({3 - q})\nbuffer_store_dwordx4 {R('v', 32 + 4 * q, 4)}, v233, {srd(SRD_OUT)}, s92 offen {a.outfl}")
        L += [I("L_done:")]
        D = II(f"""L_direct:
v_mul_u32_u24 v231, 1792, v249
v_lshl_add_u32 v231, v250, 4, v231""") + selectors() + publish(0) + II(f"""v_cmp_gt_u32 vcc, 1, v{vT + 2}
s_nop 1
s_cbranch_vccnz L_dpoll
L_dgo:""") + (self.trace() if a.gtrace else []) + lds(a.ddfl)
        for q in range(4):
            D += [I(f"s_waitcnt vmcnt({12 - 4 * q})")] + [mf(q, u, 0, q == 0) for u in range(4)]
        D += pack(0) + II(f"buffer_store_dwordx4 v[0:3], v231, {srd(SRD_OUT)}, s{sOo} offen {a.outfl}\ns_branch L_done") + poll("L_dpoll", 1, "L_dgo")
        assert a.dflag < 6
        return L, D + self.ool

    def pack_muls(self, code):
        out, since, i = [], 99, 0
        while i < len(code):
            x = code[i]
            m = re.match(rf"v_mul_f32 v(\d+), s{sC}, ", x.text)
            if m and since >= 5 and int(m.group(1)) % 2 == 0 and code[i + 1].text.startswith(f"v_mul_f32 v{int(m.group(1)) + 1}, s{sC}, ") \
                    and not any(y.kind == "mfma" for y in code[i + 2:i + 5]):
                r = R("v", int(m.group(1)), 2)
                out.append(I(f"v_pk_mul_f32 {r}, {r}, s[{sC - 1}:{sC}] op_sel:[0,1] op_sel_hi:[1,1]"))
                i += 2
                since += 1
                continue
            since = 0 if x.kind == "mfma" else since + x.vec_cost
            out.append(x)
            i += 1
        return out

    def main_kernel(self):
        a = self.a
        pre = self.init()
        tl = Timeline(self.cnt)
        self.qproj(tl)
        self.first(tl)
        seg = self.seg_pv(tl, 1, False)
        u = len(self.sched)
        for v in range(2, u, 2):
            self.seg_qk(tl, v, False)
            seg = self.seg_pv(tl, v + 1, False)
        trips = (30 - u) // 4
        assert u + 4 * trips == 30
        assert self.nh == 2 * u + a.lead, self.nh
        ini = [f"s_mov_b32 s{sCnt}, {trips}"]
        tl.spread("dma", ini, seg["end"] - 6, seg["end"] - 1)
        pre += tl.run(a.look, a.pull, a.bias)
        if a.pk:
            pre = self.pack_muls(pre)
        pre += self.hop("L")
        if a.trace == 2:
            pre += [I("s_waitcnt lgkmcnt(0)")] + self.trace()
        tl = Timeline(self.cnt)
        for v in (u, u + 2):
            self.seg_qk(tl, v, True)
            self.seg_pv(tl, v + 1, True)
        tl.spread("dma", [f"s_sub_u32 s{sCnt}, s{sCnt}, 1", f"s_cmp_lg_u32 s{sCnt}, 0"], tl.pos() - 3, tl.pos() - 1)
        code = [I(".p2align 6"), I("L_loop:")] + tl.run(a.look, a.pull, a.bias) + [I("s_cbranch_scc1 L_loop")]
        loops = [dict(code=code, count=trips, step=4)]
        shift = 4 * (trips - 1)
        self.nh += 2 * shift
        self.cnt.vm = [I(x.text, tag=x.tag and (x.tag[0], x.tag[1] + shift)) for x in self.cnt.vm]
        tl = Timeline(self.cnt)
        self.seg_qk(tl, 30, False)
        self.final(tl)
        post = tl.run(a.look, a.pull, a.bias, vlate=a.vlate) + self.trace()
        post += [I("L_join:")] + self.leak("j")
        red, some = self.reduce()
        post += red
        if a.trace:
            post += self.trace() + [I("s_waitcnt vmcnt(0)")] + self.trace()
            post += II(f"""s_add_u32 s48, s64, 0xc800000
s_addc_u32 s49, s65, 0
s_mov_b32 s50, 0x80000
s_mov_b32 s51, 0x20000
s_lshl_b32 s3, s2, 11
s_lshr_b32 s4, s{sW4}, 3
s_add_u32 s3, s3, s4
s_getreg_b32 s5, hwreg(HW_REG_XCC_ID)
v_writelane_b32 v252, s5, 63
v_lshrrev_b32 v235, 10, v{vLn}
buffer_store_dword v252, v235, s[48:51], s3 offen
buffer_store_dword v253, v235, s[48:51], s3 offen offset:256""")
        if a.leak:
            post += [I("s_waitcnt vmcnt(0)")] + self.leak("e") + II(f"""{"s_mov_b32 s96, 1" if a.leak[0] == "c" else "s_sub_u32 s96, s100, s98"}
s_mul_i32 s96, s96, {a.leak.split(",")[2]}
s_min_u32 s96, s96, 0x100000
s_memrealtime s[98:99]
s_waitcnt lgkmcnt(0)
L_leak:
s_memrealtime s[100:101]
s_waitcnt lgkmcnt(0)
s_sub_u32 s100, s100, s98
s_cmp_lt_u32 s100, s96
s_cbranch_scc1 L_leak""")
        post += [I("L_end:"), I("s_endpgm")]
        blocks = [dict(code=pre)] + loops + [dict(code=post)]
        nn = fix_hazards(blocks)
        verify_waits(blocks)
        body = sum((b["code"] for b in loops), [])
        fix_hazards([dict(code=some)])
        k0 = next(i for i, x in enumerate(post) if x.text == "L_near:")
        k1 = next(i for i, x in enumerate(post) if x.text == "L_join:")
        ren = lambda t: re.sub(r"L_r([sb])(\d+)", r"L_f\1\2", t)
        far = [I("L_far:")] + [I(ren(getattr(x, "alt", x.text))) for x in post[k0 + 1:k1]] + [I("s_branch L_join")]
        k2 = next(i for i, x in enumerate(some) if x.text.startswith("L_rs"))
        far += [I(ren(x.text)) for x in some[k2:]]
        slow = []
        for k, p in enumerate(self.slow_sites):
            slow += [I(f"L_slow{k}:"), I(f"s_call_b64 s[{sRet}:{sRet + 1}], L_rescale{p}"), I(f"s_branch L_back{k}")]
        for p in sorted(set(self.slow_sites)):
            r = self.slow_routine(p)
            fix_hazards([dict(code=r)])
            slow += r
        if a.v:
            print("nops", nn, "trips", trips, "stamps", sum(x.text.startswith("s_memtime") for x in pre + post), "body", stats(body))
            for nm, code in (("pre", pre), ("post", post)):
                segs, cur = [], []
                for x in code:
                    if x.kind == "bar":
                        segs.append(cur)
                        cur = []
                    cur.append(x)
                segs.append(cur)
                print(nm, "est cycles per segment:", [stats(s)[0] for s in segs])
        if a.pad:
            pre += [I("s_branch L_padded")] + [I("s_nop 0")] * (a.pad // 4) + [I("L_padded:")]
        if a.odrop:
            k0 = next(i for i, x in enumerate(post) if x.kind == "bar" and x.tag and x.tag[1] == WO0)
            k1 = next(i for i, x in enumerate(post) if x.text.startswith("L_join"))
            post = post[:k0] + [x for x in post[k0:k1] if not any(x.text.startswith(d) for d in a.odrop.split(","))] + post[k1:]
        if a.ldrop:
            body = [x for x in body if not any(x.text.startswith(d) for d in a.ldrop.split(","))]
        return self.place_pads(pre + body + post + some + [I("L_last:")] + far + slow)


def text(code, drop=()):
    code = [x for x in code if not any(x.text.startswith(d) for d in drop)]
    return "".join(("" if x.kind == "label" else "    ") + x.text.rstrip() + "\n" for x in code)


HEADER = """;
; LDS holds five 32-KB slots filled by LDS-DMA with the bank swizzle on the source addresses.
;   1. Q^T = Wq^T x^T, scaled by log2(e)/16 and rounded to bf16 (stays in VGPRs as B operands).
;   2. Flash attention over pairs of 32-key tiles, a {K, K} slot then a {V, V} slot. The row reference
;      starts as the true max of tile 0 plus 36 and enters QK as the C operand; a pair with a probability of 2
;      or more branches to L_rescale0, which moves it to the true running max. Row sums come from an MFMA.
; Flags live in d_ws, are cleared at entry, and are trusted only after the group's d_debug counter is full.
; L_pad*: first line of each 4-KB code page, visited early with EXEC = 0 to warm the instruction cache.
"""


def build(a):
    g = Gen(a)
    nm = NAME + "_kernel"
    s = "".join(l for l in open(f"cdna_kernels/{NAME}.s.ref") if l.startswith(";   offset") or l.startswith("; Kernarg"))
    s += "; @launch grid=(256,1,1) block=(256,1,1) lds=163840\n"
    s += HEADER
    s += '.amdgcn_target "amdgcn-amd-amdhsa--gfx950"\n.text\n'
    s += f".globl {nm}\n.p2align 12\n.p2align 8\n.type {nm},@function\n{nm}:\n" + text(g.main_kernel(), a.drop.split(",") if a.drop else ())
    s += f""".section .rodata,"a"
.p2align 6
.amdhsa_kernel {nm}
  .amdhsa_next_free_vgpr 512
  .amdhsa_next_free_sgpr 102
  .amdhsa_accum_offset 256
  .amdhsa_group_segment_fixed_size 0
  .amdhsa_kernarg_size 104
  .amdhsa_user_sgpr_count 2
  .amdhsa_user_sgpr_kernarg_segment_ptr 1
  .amdhsa_system_sgpr_workgroup_id_x 1
.end_amdhsa_kernel
"""
    return s


def parser():
    ap = argparse.ArgumentParser()
    ap.add_argument("-o", default="k.s")
    ap.add_argument("-v", action="store_true")
    for k, v in dict(X=4, Y=2, cut=7, look=10, nq=5, tb=4, t0=2, lead=3, wofast=4, wotouch=30,
                     grp=16, ctouch=1, trace=0, itrace=0, i0=2, flagstride=4352, pollsleep=2, hold=3, dip=-1, dipn=14, pre=1, fsh=5, minlead=0, xb=15, jb=10, wb=12, wc=13, eb=9, swap=0, half=24, one=0, split=1, smlag=4, rlead=16, both=5, gtrace=0, fsleep=2, ntld=4, ntstep=3, early=0, pk=1, kmaj=0, gk=8, gv=2, gf=2, gw=4, krot=1, lastbar=5, pad=0, map=0, sprint=0, slead=3, ltouch=0, dflag=4, elen=47, elen0=28, fdel=16, fdel0=34, lmin=30, forcefb=0, vlate=3, pmin=14, cmin=18).items():
        ap.add_argument("--" + k, type=int, default=v)
    for k, v in dict(tref=36.0, dmaspan=0.95, pull=3.0, bias=0.0, pf=1.0, pfl=0.3, cf=0.0, dmalo=0.14, slo=0.0, vend=0.4, vbeg=0.26, wend=0.3, wbeg=0.16, pair=1.0).items():
        ap.add_argument("--" + k, type=float, default=v)
    for k, v in dict(kvfl="nt", wfl="", stfl="sc1", rdfl="sc1", ddfl="sc1", outfl="nt", drop="", ldrop="", odrop="", prof="", tfl="", leak="", wo29="", hops="3,L", hopn="5,16", ring="DD000111222333", wos="O|...PP|PP,,,RR||PP|P", sched="2,2",
                     qseg="111122222", qs="WW||T||......WW|WWT||XQQQ|XQT,,,,|XQQQ|XQHH|....H").items():
        ap.add_argument("--" + k, default=v)
    return ap


if __name__ == "__main__":
    a = parser().parse_args()
    txt = build(a)
    open(a.o, "w").write(txt)
```
